```python
import torch

def _softmax(x, axis=-1):
    return torch.softmax(x, dim=axis)
def _gelu(x):
    return torch.nn.functional.gelu(x, approximate="tanh")
def _silu(x):
    return torch.nn.functional.silu(x)
def _sigmoid(x):
    return torch.sigmoid(x)
def _layernorm(x, axis=-1, eps=1e-5):
    m = x.mean(dim=axis, keepdim=True)
    v = x.var(dim=axis, keepdim=True, unbiased=False)
    return (x - m) / torch.sqrt(v + eps)
def _scatter_add(tgt, idx, src, axis=0):
    return tgt.clone().index_add_(axis, idx, src)
def _segment_sum(src, seg, n):
    out = torch.zeros((n,) + src.shape[1:], dtype=src.dtype)
    return out.index_add_(0, seg, src)
def _pad(x, pw):
    flat = tuple(v for pair in reversed(pw) for v in pair)
    return torch.nn.functional.pad(x, flat)

kernel_name = 'sequential_preLN__mha_block_cached__swiglu_ffn__decode'

def setup_inputs():

    _w = (lambda a: (lambda t: t.to(torch.bfloat16) if t.is_floating_point() else t)(torch.as_tensor(a)))
    def _A_setup():
        B, Sq, D = 8, 1, 512
        H, Sk, Dh = 32, 4096, 128
        return {
            "x": _w((lambda *s: torch.randn(*s, dtype=torch.bfloat16) * 0.05)(B, Sq, D)),
            "k_cache": _w((lambda *s: torch.randn(*s, dtype=torch.bfloat16) * 3.2)(B, H, Sk, Dh)),
            "v_cache": _w((lambda *s: torch.randn(*s, dtype=torch.bfloat16) * 0.4)(B, H, Sk, Dh)),
            "wq": _w((lambda *s: torch.randn(*s, dtype=torch.bfloat16) * 3.2)(D, H * Dh) * (D ** -0.5)),
            "wo": _w((lambda *s: torch.randn(*s, dtype=torch.bfloat16) * 0.4)(H * Dh, D) * ((H * Dh) ** -0.5)),
        }
    _A_in = _A_setup()

    def _B_setup():
        B, S, D, F = 8, 1, 512, 1376
        return {
            "x": _w((lambda *s: torch.randn(*s, dtype=torch.bfloat16) * 0.05)(B, S, D)),
            "w_gate": _w((lambda *s: torch.randn(*s, dtype=torch.bfloat16) * 0.05)(D, F)),
            "w_up": _w((lambda *s: torch.randn(*s, dtype=torch.bfloat16) * 0.05)(D, F)),
            "w_down": _w((lambda *s: torch.randn(*s, dtype=torch.bfloat16) * 0.05)(F, D)),
        }
    _B_in = _B_setup()

    return {
        "A_x": _A_in["x"],
        "A_k_cache": _A_in["k_cache"],
        "A_v_cache": _A_in["v_cache"],
        "A_wq": _A_in["wq"],
        "A_wo": _A_in["wo"],
        "B_x": _B_in["x"],
        "B_w_gate": _B_in["w_gate"],
        "B_w_up": _B_in["w_up"],
        "B_w_down": _B_in["w_down"],
    }

def reference(A_x, A_k_cache, A_v_cache, A_wq, A_wo, B_x, B_w_gate, B_w_up, B_w_down):
    def _A_ref(x, k_cache, v_cache, wq, wo):
        B, Sq, D = x.shape
        H, Dh = 32, 128
        q = (lambda x, *d: x.permute(*d))((x @ wq).reshape(B, Sq, H, Dh), 0, 2, 1, 3)
        scores = torch.einsum("bhqd,bhkd->bhqk", q, k_cache) * (Dh ** -0.5)
        p = _softmax(scores, axis=-1)
        o = torch.einsum("bhqk,bhkd->bhqd", p, v_cache)
        return (lambda x, *d: x.permute(*d))(o, 0, 2, 1, 3).reshape(B, Sq, H * Dh) @ wo

    def _B_ref(x, w_gate, w_up, w_down):
        g = _silu(x @ w_gate)
        u = x @ w_up
        return (g * u) @ w_down

    x = A_x
    h = x + _A_ref(_layernorm(x, axis=-1), A_k_cache, A_v_cache, A_wq, A_wo)
    h2 = h + _B_ref(_layernorm(h, axis=-1), B_w_gate, B_w_up, B_w_down)
    return h2
```

```python
import sys

class G:
    def __init__(self):
        self.lines = []
        self.vm = []
    def __call__(self, s):
        self.lines.append("  " + s)
    def label(self, n):
        self.lines.append(n + ":")
    def raw(self, s):
        self.lines.append(s)
    def issue(self, instr, tag):
        self(instr)
        self.vm.append(tag)
    def wait_vm(self, tags):
        if not isinstance(tags, (list, tuple, set)):
            tags = [tags]
        last = -1
        for i, t in enumerate(self.vm):
            if t in tags:
                last = i
        if last < 0:
            return
        n = len(self.vm) - 1 - last
        assert n <= 63
        self(f"s_waitcnt vmcnt({n})")
        self.vm = self.vm[last + 1:]
    def wait_all_vm(self):
        self("s_waitcnt vmcnt(0)")
        self.vm = []
    def nop(self, n):
        if n > 0:
            self(f"s_nop {n-1}")

DPPM = "row_mask:0xf bank_mask:0xf"

def vr(a, n):
    return f"v[{a}:{a+n-1}]"
def sr(a, n):
    return f"s[{a}:{a+n-1}]"

def allreduce_to_sgpr(g, t, s, op="add"):
    ins = "v_add_f32_dpp" if op == "add" else "v_max_f32_dpp"
    for lv in (8, 4, 2, 1):
        g.nop(2)
        g(f"{ins} v{t}, v{t}, v{t} row_ror:{lv} {DPPM}")
    g.nop(2)
    g(f"{ins} v{t}, v{t}, v{t} row_bcast:15 row_mask:0xa bank_mask:0xf")
    g.nop(2)
    g(f"{ins} v{t}, v{t}, v{t} row_bcast:31 row_mask:0xc bank_mask:0xf")
    g.nop(1)
    g(f"v_readlane_b32 s{s}, v{t}, 63")
    g.nop(2)

def row_allreduce(g, t, op="add"):
    ins = "v_add_f32_dpp" if op == "add" else "v_max_f32_dpp"
    for lv in (8, 4, 2, 1):
        g.nop(2)
        g(f"{ins} v{t}, v{t}, v{t} row_ror:{lv} {DPPM}")

def bf16r(g, dst, src):
    g(f"v_cvt_pk_bf16_f32 v{dst}, v{src}, v{src}")
    g(f"v_and_b32 v{dst}, 0xffff0000, v{dst}")

def xrow_allreduce(g, regs, tmps):
    for swp in ("v_permlane32_swap_b32", "v_permlane16_swap_b32"):
        for r, t in zip(regs, tmps):
            g(f"v_mov_b32 v{t}, v{r}")
        g.nop(2)
        for r, t in zip(regs, tmps):
            g(f"{swp} v{t}, v{r}")
        for r, t in zip(regs, tmps):
            g(f"v_add_f32 v{r}, v{t}, v{r}")

def layernorm(g, X, P, T, s_a, s_b):
    t0, t1, t2, t3, t4 = T, T+1, T+2, T+3, T+4
    g(f"v_add_f32 v{t0}, v{X[0]}, v{X[1]}")
    g(f"v_add_f32 v{t1}, v{X[2]}, v{X[3]}")
    g(f"v_add_f32 v{t2}, v{X[4]}, v{X[5]}")
    g(f"v_add_f32 v{t3}, v{X[6]}, v{X[7]}")
    g(f"v_add_f32 v{t0}, v{t0}, v{t1}")
    g(f"v_add_f32 v{t2}, v{t2}, v{t3}")
    g(f"v_add_f32 v{t0}, v{t0}, v{t2}")
    allreduce_to_sgpr(g, t0, s_a)
    g(f"v_mov_b32 v{t4}, s{s_a}")
    g(f"v_mul_f32 v{t4}, 0x3b000000, v{t4}")
    g(f"v_sub_f32 v{t0}, v{X[0]}, v{t4}")
    g(f"v_mul_f32 v{t1}, v{t0}, v{t0}")
    for i in range(1, 8):
        g(f"v_sub_f32 v{t0}, v{X[i]}, v{t4}")
        g(f"v_fmac_f32 v{t1}, v{t0}, v{t0}")
    allreduce_to_sgpr(g, t1, s_b)
    g(f"v_mov_b32 v{t1}, s{s_b}")
    g(f"v_mul_f32 v{t1}, 0x3b000000, v{t1}")
    bf16r(g, t1, t1)
    g(f"v_add_f32 v{t1}, 0x3727c5ac, v{t1}")
    bf16r(g, t1, t1)
    g(f"v_sqrt_f32 v{t1}, v{t1}")
    g.nop(1)
    bf16r(g, t1, t1)
    g(f"v_rcp_f32 v{t2}, v{t1}")
    bf16r(g, t4, t4)
    for i in range(8):
        g(f"v_sub_f32 v{t0}, v{X[i]}, v{t4}")
        bf16r(g, t0, t0)
        g(f"v_mul_f32 v{t3}, v{t0}, v{t2}")
        g(f"v_fma_f32 v{t0}, -v{t3}, v{t1}, v{t0}")
        g(f"v_fma_f32 v{X[i]}, v{t0}, v{t2}, v{t3}")
    for i in range(4):
        g(f"v_cvt_pk_bf16_f32 v{P+i}, v{X[2*i]}, v{X[2*i+1]}")

def unpack8(g, src, X):
    for i in range(4):
        g(f"v_lshlrev_b32 v{X[2*i]}, 16, v{src+i}")
        g(f"v_and_b32 v{X[2*i+1]}, 0xffff0000, v{src+i}")

WS_PART = 0x0
WS_H    = 0x80000
WS_XN2  = 0x84000
WS_OACC = 0x88000
WS_SIZE = 0x100000

L_XN = 0
L_QP = 1024
L_MAX = 9216
L_SUM = 9280
L_FLAG = 9344
L_OP = 10240
L_WP = 18432
L_FIN = 18432
K1_LDS = 51200

def srd(g, d, lo, hi, nbytes):
    g(f"s_mov_b32 s{d}, s{lo}")
    g(f"s_and_b32 s{d+1}, s{hi}, 0xffff")
    g(f"s_mov_b32 s{d+2}, {nbytes}")
    g(f"s_mov_b32 s{d+3}, 0x00020000")

def srd_off(g, d, lo, hi, soff, nbytes):
    g(f"s_add_u32 s{d}, s{lo}, s{soff}")
    g(f"s_addc_u32 s{d+1}, s{hi}, 0")
    g(f"s_and_b32 s{d+1}, s{d+1}, 0xffff")
    g(f"s_mov_b32 s{d+2}, {nbytes}")
    g(f"s_mov_b32 s{d+3}, 0x00020000")

def gen_k1(g, NT="", DEPTH=16, INTERLEAVE=False):
    nt = " nt" if NT else ""
    g.raw(".globl attn_kernel")
    g.raw(".p2align 8")
    g.raw(".type attn_kernel,@function")
    g.label("attn_kernel")
    g("s_cmp_ge_u32 s2, 256")
    g("s_cbranch_scc1 L1_end")
    g("s_load_dwordx4 s[4:7], s[0:1], 0")
    g("s_load_dwordx4 s[8:11], s[0:1], 16")
    g("s_load_dwordx2 s[12:13], s[0:1], 32")
    g("s_load_dwordx4 s[16:19], s[0:1], 80")
    g("v_lshrrev_b32 v5, 6, v0")
    g("v_and_b32 v1, 63, v0")
    g("v_and_b32 v2, 15, v0")
    g("v_bfe_u32 v3, v0, 4, 2")
    g("v_readfirstlane_b32 s20, v5")
    g("s_and_b32 s21, s2, 31")
    g("s_lshr_b32 s22, s2, 5")
    g("s_mov_b32 s64, 0x00010001")
    g("s_mov_b32 s65, 0x00010001")
    for i in range(1, 16):
        g(f"s_lshl_b64 s[{64+2*i}:{65+2*i}], s[64:65], {i}")
    g("v_lshlrev_b32 v5, 4, v1")
    if INTERLEAVE:
        g("s_lshl_b32 s56, s20, 10")
    else:
        g("s_lshl_b32 s56, s20, 16")
    g("v_add_u32 v4, s56, v5")
    g("s_lshl_b32 s56, s20, 18")
    g("v_lshlrev_b32 v6, 13, v3")
    g("v_lshlrev_b32 v7, 4, v2")
    g("v_add3_u32 v6, v6, v7, s56")
    g("s_waitcnt lgkmcnt(0)")
    g("s_lshl_b32 s56, s22, 10")
    srd_off(g, 40, 4, 5, 56, 1024)
    g("s_lshl_b32 s56, s21, 8")
    g("s_sub_u32 s57, 0x400000, s56")
    g("s_add_u32 s32, s10, s56")
    g("s_addc_u32 s33, s11, 0")
    g("s_and_b32 s33, s33, 0xffff")
    g("s_mov_b32 s34, s57")
    g("s_mov_b32 s35, 0x00020000")
    g("s_lshl_b32 s56, s2, 20")
    srd_off(g, 24, 6, 7, 56, 0x100000)
    g.issue("buffer_load_dwordx4 v[24:27], v5, s[40:43], 0 offen", "x")
    for i in range(8):
        g(f"s_mov_b32 s57, {i*32768}")
        g.issue(f"buffer_load_dwordx4 {vr(32+4*i,4)}, v6, s[32:35], s57 offen", "wq")
    srd_off(g, 28, 8, 9, 56, 0x100000)
    g("s_lshl_b32 s56, s21, 17")
    srd_off(g, 36, 12, 13, 56, 0x20000)
    srd(g, 44, 18, 19, WS_SIZE)
    srd(g, 48, 16, 17, 256)

    RING = 64
    def slot(n):
        return RING + 4 * (n % DEPTH)
    cur_soff = [None]
    def issue_stream(n):
        if n < 128:
            srdn = 24 if n < 64 else 28
            i = n % 64
            if INTERLEAVE:
                so, imm = i * 16384, 0
            else:
                so, imm = (i >> 2) * 4096, (i & 3) * 1024
            if so == 0:
                sop = "0"
            else:
                if cur_soff[0] != so:
                    g(f"s_mov_b32 s58, {so}")
                    cur_soff[0] = so
                sop = "s58"
            off = f" offset:{imm}" if imm else ""
            g.issue(f"buffer_load_dwordx4 {vr(slot(n),4)}, v4, {sr(srdn,4)}, {sop} offen{off}{nt}", ("s", n))
        elif n < 136:
            j = n - 128
            if j == 0:
                g("s_lshl_b32 s59, s20, 13")
            if j == 4:
                g("s_add_u32 s59, s59, 4096")
            off = f" offset:{(j&3)*1024}" if (j & 3) else ""
            g.issue(f"buffer_load_dwordx4 {vr(32+4*j,4)}, v5, s[36:39], s59 offen{off}", "wo")
    for n in range(DEPTH):
        issue_stream(n)

    g.wait_vm("x")
    X = list(range(16, 24))
    unpack8(g, 24, X)
    layernorm(g, X, 8, 24, 60, 61)
    g(f"ds_write_b128 v5, v[8:11] offset:{L_XN}")
    g("s_lshl_b32 s56, s20, 6")
    g("v_lshlrev_b32 v7, 1, v3")
    g("v_add_u32 v7, s56, v7")
    g("s_waitcnt lgkmcnt(0)")
    for i in range(8):
        g(f"ds_read_u16 v{16+i}, v7 offset:{L_XN + i*8}")
    for e in range(8):
        g(f"v_mov_b32 v{24+e}, 0")
    g("s_waitcnt lgkmcnt(0)")
    for i in range(8):
        g(f"v_lshlrev_b32 v{8+i}, 16, v{16+i}")
    g.wait_vm("wq")
    for i in range(8):
        for e in range(4):
            g(f"v_dot2c_f32_bf16 v{24+2*e}, v{16+i}, v{32+4*i+e}")
            g(f"v_dot2c_f32_bf16 v{25+2*e}, v{8+i}, v{32+4*i+e}")
    g.nop(3)
    xrow_allreduce(g, list(range(24, 32)), list(range(16, 24)))
    g("s_lshl_b32 s56, s20, 9")
    g("v_lshlrev_b32 v7, 5, v2")
    g("v_add_u32 v6, s56, v7")
    g(f"ds_write_b128 v6, v[24:27] offset:{L_QP}")
    g(f"ds_write_b128 v6, v[28:31] offset:{L_QP+16}")
    g("v_lshl_add_u32 v6, v3, 11, v7")
    g("s_waitcnt lgkmcnt(0)")
    g("s_barrier")
    for k in range(4):
        g(f"ds_read_b128 {vr(32+8*k,4)}, v6 offset:{L_QP + k*512}")
        g(f"ds_read_b128 {vr(36+8*k,4)}, v6 offset:{L_QP + k*512 + 16}")
    g("s_waitcnt lgkmcnt(0)")
    for e in range(8):
        g(f"v_add_f32 v{32+e}, v{32+e}, v{40+e}")
        g(f"v_add_f32 v{48+e}, v{48+e}, v{56+e}")
    for e in range(8):
        g(f"v_add_f32 v{32+e}, v{32+e}, v{48+e}")
    xrow_allreduce(g, list(range(32, 40)), list(range(40, 48)))
    for e in range(4):
        g(f"v_cvt_pk_bf16_f32 v{8+e}, v{32+2*e}, v{33+2*e}")
    for r in range(4):
        g(f"v_mov_b32 v{12+r}, 0")

    GR = 4
    for j in range(64 // GR):
        ns = list(range(j*GR, j*GR + GR))
        g.wait_vm([("s", n) for n in ns])
        for e in range(4):
            for u, n in enumerate(ns):
                c = "0" if e == 0 else f"v{16+u}"
                g(f"v_dot2_f32_bf16 v{16+u}, v{slot(n)+e}, v{8+e}, {c}")
        for n in ns:
            issue_stream(n + DEPTH)
        for lv in (8, 4, 2, 1):
            for u in range(GR):
                g(f"v_add_f32_dpp v{16+u}, v{16+u}, v{16+u} row_ror:{lv} {DPPM}")
        for u, n in enumerate(ns):
            i, r = n % 16, n // 16
            g(f"v_cndmask_b32_e64 v{12+r}, v{12+r}, v{16+u}, s[{64+2*i}:{65+2*i}]")
    for r in range(4):
        bf16r(g, 12+r, 12+r)
        g(f"v_mul_f32 v{12+r}, 0x3db504f3, v{12+r}")
        bf16r(g, 12+r, 12+r)
    g("v_max3_f32 v16, v12, v13, v14")
    g("v_max_f32 v16, v16, v15")
    allreduce_to_sgpr(g, 16, 60, op="max")
    g("v_mov_b32 v16, s60")
    g("s_lshl_b32 s56, s20, 2")
    g("v_mov_b32 v17, s56")
    g(f"ds_write_b32 v17, v16 offset:{L_MAX}")
    g("v_lshlrev_b32 v7, 2, v2")
    g("s_waitcnt lgkmcnt(0)")
    g("s_barrier")
    g(f"ds_read_b32 v16, v7 offset:{L_MAX}")
    g("s_waitcnt lgkmcnt(0)")
    row_allreduce(g, 16, op="max")
    for r in range(4):
        g(f"v_sub_f32 v{12+r}, v{12+r}, v16")
        g(f"v_mul_f32 v{12+r}, 0x3fb8aa3b, v{12+r}")
        g(f"v_exp_f32 v{12+r}, v{12+r}")
    g.nop(1)
    g("v_add_f32 v18, v12, v13")
    g("v_add_f32 v19, v14, v15")
    g("v_add_f32 v18, v18, v19")
    allreduce_to_sgpr(g, 18, 60)
    g("v_mov_b32 v18, s60")
    g(f"ds_write_b32 v17, v18 offset:{L_SUM}")
    g("s_waitcnt lgkmcnt(0)")
    g("s_barrier")
    g(f"ds_read_b32 v18, v7 offset:{L_SUM}")
    g("s_waitcnt lgkmcnt(0)")
    row_allreduce(g, 18)
    g.nop(1)
    g("v_readlane_b32 s60, v18, 0")
    g.nop(2)
    g("v_mov_b32 v18, s60")
    g("v_rcp_f32 v19, v18")
    g.nop(1)
    for r in range(4):
        g(f"v_mul_f32 v24, v{12+r}, v19")
        g(f"v_fma_f32 v25, -v24, v18, v{12+r}")
        g(f"v_fma_f32 v24, v25, v19, v24")
        g(f"v_cvt_pk_bf16_f32 v{16+4+r}, 0, v24")
        g(f"v_cvt_pk_bf16_f32 v{12+r}, v24, 0")
    PLO, PHI = 12, 20
    for e in range(8):
        g(f"v_mov_b32 v{24+e}, 0")
    g.nop(2)
    for j in range(64 // GR):
        ns = list(range(64 + j*GR, 64 + j*GR + GR))
        g.wait_vm([("s", n) for n in ns])
        for u, n in enumerate(ns):
            i, r = (n - 64) % 16, (n - 64) // 16
            for e in range(4):
                g(f"v_dot2c_f32_bf16_dpp v{24+2*e}, v{PLO+r}, v{slot(n)+e} row_newbcast:{i} {DPPM}")
                g(f"v_dot2c_f32_bf16_dpp v{25+2*e}, v{PHI+r}, v{slot(n)+e} row_newbcast:{i} {DPPM}")
            issue_stream(n + DEPTH)
    g.nop(3)
    xrow_allreduce(g, list(range(24, 32)), list(range(8, 16)))
    g("s_lshl_b32 s56, s20, 9")
    g("v_lshlrev_b32 v7, 5, v2")
    g("v_add_u32 v6, s56, v7")
    g(f"ds_write_b128 v6, v[24:27] offset:{L_OP}")
    g(f"ds_write_b128 v6, v[28:31] offset:{L_OP+16}")
    g("v_lshrrev_b32 v6, 3, v1")
    g("v_and_b32 v7, 7, v1")
    g("s_lshl_b32 s56, s20, 5")
    g("v_lshlrev_b32 v6, 9, v6")
    g("v_lshl_add_u32 v6, v7, 2, v6")
    g("v_add_u32 v6, s56, v6")
    g("s_waitcnt lgkmcnt(0)")
    g("s_barrier")
    g(f"ds_read_b32 v8, v6 offset:{L_OP}")
    g(f"ds_read_b32 v9, v6 offset:{L_OP+4096}")
    g("s_waitcnt lgkmcnt(0)")
    g("v_add_f32 v8, v8, v9")
    g.nop(2)
    g(f"v_add_f32_dpp v8, v8, v8 row_ror:8 {DPPM}")
    xrow_allreduce(g, [8], [9])
    bf16r(g, 8, 8)
    g.nop(1)
    for j in range(8):
        g(f"v_readlane_b32 s{72+j}, v8, {j}")
    g.nop(1)
    for j in range(8):
        g(f"s_lshr_b32 s{64+j}, s{72+j}, 16")
    for e in range(8):
        g(f"v_mov_b32 v{24+e}, 0")
    g.wait_vm("wo")
    for j in range(8):
        for e in range(4):
            g(f"v_dot2c_f32_bf16 v{24+2*e}, s{64+j}, v{32+4*j+e}")
            g(f"v_dot2c_f32_bf16 v{25+2*e}, s{72+j}, v{32+4*j+e}")
    g("s_lshl_b32 s56, s20, 11")
    g("v_lshlrev_b32 v6, 5, v1")
    g("v_add_u32 v6, s56, v6")
    g.nop(2)
    g(f"ds_write_b128 v6, v[24:27] offset:{L_WP}")
    g(f"ds_write_b128 v6, v[28:31] offset:{L_WP+16}")
    g("v_and_b32 v6, 511, v0")
    g("v_lshlrev_b32 v6, 2, v6")
    g("s_waitcnt lgkmcnt(0)")
    g("s_barrier")
    g("s_cmp_ge_u32 s20, 8")
    g("s_cbranch_scc1 L1_skipred")
    for k in range(16):
        g(f"ds_read_b32 v{8+k}, v6 offset:{L_WP + k*2048}")
    g("s_waitcnt lgkmcnt(0)")
    for k in range(8):
        g(f"v_add_f32 v{8+k}, v{8+k}, v{16+k}")
    for k in range(4):
        g(f"v_add_f32 v{8+k}, v{8+k}, v{12+k}")
    g("v_add_f32 v8, v8, v9")
    g("v_add_f32 v10, v10, v11")
    g("v_add_f32 v8, v8, v10")
    g("s_lshl_b32 s56, s2, 11")
    g(f"buffer_store_dword v8, v6, s[44:47], s56 offen sc1")
    g.label("L1_skipred")
    g("s_waitcnt vmcnt(0)")
    g("s_barrier")
    g("s_cmp_lg_u32 s20, 0")
    g("s_cbranch_scc1 L1_wait_flag")
    g("s_lshl_b32 s56, s22, 2")
    g("v_mov_b32 v8, 1")
    g("v_mov_b32 v9, s56")
    g("v_cmp_eq_u32 vcc, 0, v1")
    g("s_and_saveexec_b64 s[62:63], vcc")
    g("buffer_atomic_add v8, v9, s[48:51], 0 offen sc0")
    g("s_waitcnt vmcnt(0)")
    g("s_mov_b64 exec, s[62:63]")
    g("v_readfirstlane_b32 s56, v8")
    g("v_mov_b32 v9, 0")
    g("s_cmp_eq_u32 s56, 31")
    g("s_cselect_b32 s56, 1, 0")
    g("v_mov_b32 v8, s56")
    g(f"ds_write_b32 v9, v8 offset:{L_FLAG}")
    g("s_waitcnt lgkmcnt(0)")
    g.label("L1_wait_flag")
    g("s_barrier")
    g("v_mov_b32 v9, 0")
    g(f"ds_read_b32 v8, v9 offset:{L_FLAG}")
    g("s_waitcnt lgkmcnt(0)")
    g("v_readfirstlane_b32 s56, v8")
    g("s_cmp_eq_u32 s56, 0")
    g("s_cbranch_scc1 L1_end")
    g("v_and_b32 v6, 127, v0")
    g("v_lshrrev_b32 v7, 7, v0")
    g("v_lshlrev_b32 v6, 4, v6")
    g("v_lshl_add_u32 v8, v7, 13, v6")
    g("s_lshl_b32 s56, s22, 16")
    for k in range(4):
        off = f" offset:{k*2048}" if k*2048 < 4096 and k else ""
        if k == 2:
            g("s_add_u32 s56, s56, 4096")
        off = f" offset:{(k&1)*2048}" if (k & 1) else ""
        g(f"buffer_load_dwordx4 {vr(12+4*k,4)}, v8, s[44:47], s56 offen{off} sc1")
    g("buffer_load_dwordx4 v[28:31], v5, s[40:43], 0 offen")
    g("v_lshl_add_u32 v8, v7, 11, v6")
    g("s_waitcnt vmcnt(0)")
    for e in range(4):
        g(f"v_add_f32 v{12+e}, v{12+e}, v{16+e}")
        g(f"v_add_f32 v{20+e}, v{20+e}, v{24+e}")
    for e in range(4):
        g(f"v_add_f32 v{12+e}, v{12+e}, v{20+e}")
    g(f"ds_write_b128 v8, v[12:15] offset:{L_FIN}")
    g("s_waitcnt lgkmcnt(0)")
    g("s_barrier")
    g("s_cmp_lg_u32 s20, 0")
    g("s_cbranch_scc1 L1_end")
    g("v_lshlrev_b32 v6, 5, v1")
    for k in range(8):
        g(f"ds_read_b128 {vr(32+8*k,4)}, v6 offset:{L_FIN + k*2048}")
        g(f"ds_read_b128 {vr(36+8*k,4)}, v6 offset:{L_FIN + k*2048 + 16}")
    g("s_waitcnt lgkmcnt(0)")
    for k in (0, 2, 4, 6):
        for e in range(8):
            g(f"v_add_f32 v{32+8*k+e}, v{32+8*k+e}, v{40+8*k+e}")
    for k in (0, 4):
        for e in range(8):
            g(f"v_add_f32 v{32+8*k+e}, v{32+8*k+e}, v{48+8*k+e}")
    for e in range(8):
        g(f"v_add_f32 v{32+e}, v{32+e}, v{64+e}")
    X = list(range(16, 24))
    unpack8(g, 28, X)
    for e in range(8):
        bf16r(g, 32+e, 32+e)
        g(f"v_add_f32 v{16+e}, v{16+e}, v{32+e}")
        bf16r(g, 16+e, 16+e)
    g("s_lshl_b32 s56, s22, 11")
    g(f"s_add_u32 s57, s56, {WS_H}")
    g("buffer_store_dwordx4 v[16:19], v6, s[44:47], s57 offen")
    g("buffer_store_dwordx4 v[20:23], v6, s[44:47], s57 offen offset:16")
    for e in range(4):
        g(f"v_mov_b32 v{40+e}, 0")
    g(f"s_add_u32 s57, s56, {WS_OACC}")
    g("buffer_store_dwordx4 v[40:43], v6, s[44:47], s57 offen")
    g("buffer_store_dwordx4 v[40:43], v6, s[44:47], s57 offen offset:16")
    for e in range(8):
        g(f"v_mov_b32 v{32+e}, v{16+e}")
    layernorm(g, list(range(32, 40)), 8, 24, 60, 61)
    g("s_lshl_b32 s56, s22, 10")
    g(f"s_add_u32 s57, s56, {WS_XN2}")
    g("buffer_store_dwordx4 v[8:11], v5, s[44:47], s57 offen")
    g.label("L1_end")
    g("s_endpgm")

M_X = 0
M_GU = 8192
M_ACT = 24576
M_FLAG = 25088
M_DN = 25600
K2_LDS = 58368
NWG2 = 43

def gen_k2(g):
    g.raw(".globl ffn_kernel")
    g.raw(".p2align 8")
    g.raw(".type ffn_kernel,@function")
    g.label("ffn_kernel")
    g(f"s_cmp_ge_u32 s2, {NWG2}")
    g("s_cbranch_scc1 L2_end")
    g("s_load_dwordx4 s[4:7], s[0:1], 48")
    g("s_load_dwordx4 s[8:11], s[0:1], 64")
    g("s_load_dwordx4 s[16:19], s[0:1], 80")
    g("v_lshrrev_b32 v5, 6, v0")
    g("v_and_b32 v1, 63, v0")
    g("v_readfirstlane_b32 s20, v5")
    g("s_lshr_b32 s21, s20, 3")
    g("s_and_b32 s22, s20, 7")
    g("v_and_b32 v2, 7, v1")
    g("v_lshrrev_b32 v3, 3, v1")
    g("s_lshl_b32 s56, s22, 3")
    g("v_add_u32 v4, s56, v3")
    g("s_movk_i32 s57, 22016")
    g("v_mul_lo_u32 v6, v4, s57")
    g("s_lshl_b32 s56, s2, 6")
    g("v_lshl_add_u32 v6, v2, 3, v6")
    g("v_add_u32 v6, s56, v6")
    g("v_and_b32 v7, 15, v1")
    g("v_lshrrev_b32 v8, 4, v1")
    g("s_lshl_b32 s56, s2, 15")
    g("s_lshl_b32 s57, s21, 14")
    g("s_add_u32 s56, s56, s57")
    g("s_lshl_b32 s57, s22, 7")
    g("s_add_u32 s56, s56, s57")
    g("v_lshlrev_b32 v9, 12, v8")
    g("v_lshl_add_u32 v9, v7, 3, v9")
    g("v_add_u32 v9, s56, v9")
    g("v_lshlrev_b32 v10, 4, v0")
    g("s_waitcnt lgkmcnt(0)")
    g("s_cmp_eq_u32 s21, 0")
    g("s_cselect_b32 s24, s4, s6")
    g("s_cselect_b32 s25, s5, s7")
    g("s_and_b32 s25, s25, 0xffff")
    g("s_mov_b32 s26, 1409024")
    g("s_mov_b32 s27, 0x00020000")
    srd(g, 28, 8, 9, 1409024)
    srd(g, 32, 10, 11, 8192)
    srd(g, 44, 18, 19, WS_SIZE)
    srd(g, 48, 16, 17, 256)
    g(f"s_mov_b32 s56, {WS_XN2}")
    srd_off(g, 36, 18, 19, 56, 8192)
    g.issue("buffer_load_dwordx4 v[12:15], v10, s[36:39], 0 offen", "x")
    for j in range(8):
        if j >= 2:
            g(f"s_movk_i32 s57, {j*2752}")
            g.issue(f"buffer_load_dwordx2 {vr(16+2*j,2)}, v6, s[24:27], s57 offen", "w")
        else:
            off = f" offset:{j*2752}" if j else ""
            g.issue(f"buffer_load_dwordx2 {vr(16+2*j,2)}, v6, s[24:27], 0 offen{off}", "w")
    for j in range(4):
        off = f" offset:{j*1024}" if j else ""
        g.issue(f"buffer_load_dwordx2 {vr(32+2*j,2)}, v9, s[28:31], 0 offen{off}", "d")
    g.wait_vm("x")
    g("s_cmp_ge_u32 s20, 8")
    g("s_cbranch_scc1 L2_nox")
    g(f"ds_write_b128 v10, v[12:15] offset:{M_X}")
    g.label("L2_nox")
    g("v_lshlrev_b32 v11, 4, v4")
    g("s_waitcnt lgkmcnt(0)")
    g("s_barrier")
    XP = 40
    for b in range(8):
        g(f"ds_read_b128 {vr(XP+4*b,4)}, v11 offset:{M_X + b*1024}")
    g.wait_vm("w")
    g("s_mov_b32 s60, 0x05040100")
    g("s_mov_b32 s61, 0x07060302")
    WP = 72
    for p in range(4):
        for d in range(2):
            a, b2 = 16 + 2*(2*p) + d, 16 + 2*(2*p+1) + d
            g(f"v_perm_b32 v{WP+4*p+2*d}, v{b2}, v{a}, s60")
            g(f"v_perm_b32 v{WP+4*p+2*d+1}, v{b2}, v{a}, s61")
    g("s_waitcnt lgkmcnt(0)")
    AC = 88
    for p in range(4):
        for b in range(8):
            for c in range(4):
                cc = "0" if p == 0 else f"v{AC+4*b+c}"
                g(f"v_dot2_f32_bf16 v{AC+4*b+c}, v{WP+4*p+c}, v{XP+4*b+p}, {cc}")
    g.nop(3)
    for a in range(32):
        g(f"v_add_f32_dpp v{AC+a}, v{AC+a}, v{AC+a} row_ror:8 {DPPM}")
    g.nop(2)
    for a in range(16):
        g(f"v_permlane16_swap_b32 v{AC+a}, v{AC+a+16}")
    for a in range(16):
        g(f"v_add_f32 v{AC+a}, v{AC+a}, v{AC+a+16}")
    g.nop(2)
    for a in range(8):
        g(f"v_permlane32_swap_b32 v{AC+a}, v{AC+a+8}")
    for a in range(8):
        g(f"v_add_f32 v{AC+a}, v{AC+a}, v{AC+a+8}")
    g("v_bfe_u32 v12, v1, 5, 1")
    g("v_bfe_u32 v13, v1, 4, 1")
    g("v_lshlrev_b32 v12, 8, v12")
    g("v_lshl_add_u32 v12, v13, 9, v12")
    g("v_lshl_add_u32 v12, v2, 4, v12")
    g("s_lshl_b32 s56, s22, 1")
    g("s_add_u32 s56, s56, s21")
    g("s_lshl_b32 s56, s56, 10")
    g("v_add_u32 v12, s56, v12")
    g(f"ds_write_b128 v12, {vr(AC,4)} offset:{M_GU}")
    g(f"ds_write_b128 v12, {vr(AC+4,4)} offset:{M_GU+128}")
    g("v_lshlrev_b32 v12, 2, v0")
    g("s_waitcnt lgkmcnt(0)")
    g("s_barrier")
    g("s_cmp_ge_u32 s20, 4")
    g("s_cbranch_scc1 L2_noact")
    for wk in range(8):
        g(f"ds_read_b32 v{40+wk}, v12 offset:{M_GU + wk*2048}")
        g(f"ds_read_b32 v{48+wk}, v12 offset:{M_GU + wk*2048 + 1024}")
    g("s_waitcnt lgkmcnt(0)")
    for base in (40, 48):
        for k in range(4):
            g(f"v_add_f32 v{base+k}, v{base+k}, v{base+4+k}")
        g(f"v_add_f32 v{base}, v{base}, v{base+1}")
        g(f"v_add_f32 v{base+2}, v{base+2}, v{base+3}")
        g(f"v_add_f32 v{base}, v{base}, v{base+2}")
        bf16r(g, base, base)
    g("v_mul_f32 v41, 0xbfb8aa3b, v40")
    g("v_exp_f32 v41, v41")
    g.nop(1)
    g("v_add_f32 v41, 1.0, v41")
    g("v_rcp_f32 v42, v41")
    g.nop(1)
    g("v_mul_f32 v43, v40, v42")
    g("v_fma_f32 v44, -v43, v41, v40")
    g("v_fma_f32 v43, v44, v42, v43")
    g("v_mul_f32 v45, v40, v42")
    g("v_cmp_u_f32 vcc, v43, v43")
    g.nop(2)
    g("v_cndmask_b32 v43, v43, v45, vcc")
    bf16r(g, 43, 43)
    g("v_mul_f32 v43, v43, v48")
    g("v_cvt_pk_bf16_f32 v43, v43, v43")
    g("v_lshrrev_b32 v12, 1, v12")
    g(f"ds_write_b16 v12, v43 offset:{M_ACT}")
    g("s_waitcnt lgkmcnt(0)")
    g.label("L2_noact")
    g("s_barrier")
    g("s_lshl_b32 s56, s21, 5")
    g("v_lshlrev_b32 v12, 3, v8")
    g("v_add_u32 v12, s56, v12")
    AP = 40
    for b in range(8):
        g(f"ds_read_b64 {vr(AP+2*b,2)}, v12 offset:{M_ACT + b*64}")
    g.wait_vm("d")
    for p in range(2):
        for d in range(2):
            a, b2 = 32 + 2*(2*p) + d, 32 + 2*(2*p+1) + d
            g(f"v_perm_b32 v{WP+4*p+2*d}, v{b2}, v{a}, s60")
            g(f"v_perm_b32 v{WP+4*p+2*d+1}, v{b2}, v{a}, s61")
    g("s_waitcnt lgkmcnt(0)")
    for p in range(2):
        for b in range(8):
            for c in range(4):
                cc = "0" if p == 0 else f"v{AC+4*b+c}"
                g(f"v_dot2_f32_bf16 v{AC+4*b+c}, v{WP+4*p+c}, v{AP+2*b+p}, {cc}")
    g.nop(3)
    for a in range(16):
        g(f"v_permlane16_swap_b32 v{AC+a}, v{AC+a+16}")
    for a in range(16):
        g(f"v_add_f32 v{AC+a}, v{AC+a}, v{AC+a+16}")
    g.nop(2)
    for a in range(8):
        g(f"v_permlane32_swap_b32 v{AC+a}, v{AC+a+8}")
    for a in range(8):
        g(f"v_add_f32 v{AC+a}, v{AC+a}, v{AC+a+8}")
    g("v_bfe_u32 v12, v1, 5, 1")
    g("v_bfe_u32 v13, v1, 4, 1")
    g("v_lshlrev_b32 v12, 12, v12")
    g("v_lshl_add_u32 v12, v13, 13, v12")
    g("v_lshl_add_u32 v12, v7, 4, v12")
    g("s_lshl_b32 s56, s21, 14")
    g("s_lshl_b32 s57, s22, 8")
    g("s_add_u32 s56, s56, s57")
    g("v_add_u32 v12, s56, v12")
    g(f"ds_write_b128 v12, {vr(AC,4)} offset:{M_DN}")
    g(f"ds_write_b128 v12, {vr(AC+4,4)} offset:{M_DN+2048}")
    g("v_lshlrev_b32 v12, 2, v0")
    g("s_waitcnt lgkmcnt(0)")
    g("s_barrier")
    for j in range(4):
        g(f"ds_read_b32 v{40+j}, v12 offset:{M_DN + j*4096}")
        g(f"ds_read_b32 v{44+j}, v12 offset:{M_DN + 16384 + j*4096}")
    g("s_waitcnt lgkmcnt(0)")
    g(f"s_mov_b32 s56, {WS_OACC}")
    for j in range(4):
        g(f"v_add_f32 v{40+j}, v{40+j}, v{44+j}")
        if j:
            g("s_add_u32 s56, s56, 4096")
        g(f"buffer_atomic_add_f32 v{40+j}, v12, s[44:47], s56 offen")
    g("s_waitcnt vmcnt(0)")
    g("s_barrier")
    g("s_cmp_lg_u32 s20, 0")
    g("s_cbranch_scc1 L2_wait_flag")
    g("v_mov_b32 v8, 1")
    g("v_mov_b32 v9, 0")
    g("v_cmp_eq_u32 vcc, 0, v1")
    g("s_and_saveexec_b64 s[62:63], vcc")
    g("buffer_atomic_add v8, v9, s[48:51], 0 offen sc0")
    g("s_waitcnt vmcnt(0)")
    g("s_mov_b64 exec, s[62:63]")
    g("v_readfirstlane_b32 s56, v8")
    g(f"s_cmp_eq_u32 s56, {NWG2-1}")
    g("s_cselect_b32 s56, 1, 0")
    g("v_mov_b32 v8, s56")
    g(f"ds_write_b32 v9, v8 offset:{M_FLAG}")
    g("s_waitcnt lgkmcnt(0)")
    g.label("L2_wait_flag")
    g("s_barrier")
    g("v_mov_b32 v9, 0")
    g(f"ds_read_b32 v8, v9 offset:{M_FLAG}")
    g("s_waitcnt lgkmcnt(0)")
    g("v_readfirstlane_b32 s56, v8")
    g("s_cmp_eq_u32 s56, 0")
    g("s_cbranch_scc1 L2_end")
    g(f"s_mov_b32 s56, {WS_OACC}")
    g(f"s_mov_b32 s57, {WS_H}")
    g("buffer_load_dwordx4 v[12:15], v10, s[44:47], s56 offen sc0 sc1")
    g("buffer_load_dwordx4 v[16:19], v10, s[44:47], s57 offen")
    g("v_lshlrev_b32 v11, 3, v0")
    g("s_waitcnt vmcnt(0)")
    for e in range(4):
        bf16r(g, 12+e, 12+e)
        g(f"v_add_f32 v{12+e}, v{12+e}, v{16+e}")
    g("v_cvt_pk_bf16_f32 v20, v12, v13")
    g("v_cvt_pk_bf16_f32 v21, v14, v15")
    g("buffer_store_dwordx2 v[20:21], v11, s[32:35], 0 offen")
    g.label("L2_end")
    g("s_endpgm")

def kd(name, vgpr, sgpr):
    return f""".amdhsa_kernel {name}
  .amdhsa_next_free_vgpr {vgpr}
  .amdhsa_next_free_sgpr {sgpr}
  .amdhsa_accum_offset {vgpr}
  .amdhsa_group_segment_fixed_size 0
  .amdhsa_kernarg_size 96
  .amdhsa_user_sgpr_count 2
  .amdhsa_user_sgpr_kernarg_segment_ptr 1
  .amdhsa_system_sgpr_workgroup_id_x 1
.end_amdhsa_kernel
"""

HEADER = open("sequential_preLN__mha_block_cached__swiglu_ffn__decode.s.ref").read().split("; Override launch")[0]

def build(NT="", DEPTH=16, INTERLEAVE=False):
    g1 = G(); gen_k1(g1, NT=NT, DEPTH=DEPTH, INTERLEAVE=INTERLEAVE)
    g2 = G(); gen_k2(g2)
    out = HEADER
    out += f"; @launch kernel=attn_kernel grid=(256,1,1) block=(1024,1,1) lds={K1_LDS}\n"
    out += f"; @launch kernel=ffn_kernel grid=({NWG2},1,1) block=(1024,1,1) lds={K2_LDS}\n"
    out += '.amdgcn_target "amdgcn-amd-amdhsa--gfx950"\n.text\n'
    out += "\n".join(g1.lines) + "\n" + "\n".join(g2.lines) + "\n"
    out += '.section .rodata,"a"\n.p2align 6\n'
    out += kd("attn_kernel", 128, 100)
    out += ".p2align 6\n"
    out += kd("ffn_kernel", 128, 100)
    return out

if __name__ == "__main__":
    import argparse
    ap = argparse.ArgumentParser()
    ap.add_argument("-o", default="sequential_preLN__mha_block_cached__swiglu_ffn__decode.s")
    ap.add_argument("--nt", action="store_true")
    ap.add_argument("--il", action="store_true")
    ap.add_argument("--depth", type=int, default=16)
    a = ap.parse_args()
    open(a.o, "w").write(build(NT="nt" if a.nt else "", DEPTH=a.depth, INTERLEAVE=a.il))
    print("wrote", a.o)
```

```python
import sys

class G:
    def __init__(self):
        self.lines = []
        self.vm = []
    def __call__(self, s):
        self.lines.append("  " + s)
    def label(self, n):
        self.lines.append(n + ":")
    def raw(self, s):
        self.lines.append(s)
    def issue(self, instr, tag):
        self(instr)
        self.vm.append(tag)
    def wait_vm(self, tags):
        if not isinstance(tags, (list, tuple, set)):
            tags = [tags]
        last = -1
        for i, t in enumerate(self.vm):
            if t in tags:
                last = i
        if last < 0:
            return
        n = len(self.vm) - 1 - last
        assert n <= 63
        self(f"s_waitcnt vmcnt({n})")
        self.vm = self.vm[last + 1:]
    def wait_all_vm(self):
        self("s_waitcnt vmcnt(0)")
        self.vm = []
    def nop(self, n):
        if n > 0:
            self(f"s_nop {n-1}")

DPPM = "row_mask:0xf bank_mask:0xf"

def vr(a, n):
    return f"v[{a}:{a+n-1}]"
def sr(a, n):
    return f"s[{a}:{a+n-1}]"

def allreduce_to_sgpr(g, t, s, op="add"):
    ins = "v_add_f32_dpp" if op == "add" else "v_max_f32_dpp"
    for lv in (8, 4, 2, 1):
        g.nop(2)
        g(f"{ins} v{t}, v{t}, v{t} row_ror:{lv} {DPPM}")
    g.nop(2)
    g(f"{ins} v{t}, v{t}, v{t} row_bcast:15 row_mask:0xa bank_mask:0xf")
    g.nop(2)
    g(f"{ins} v{t}, v{t}, v{t} row_bcast:31 row_mask:0xc bank_mask:0xf")
    g.nop(1)
    g(f"v_readlane_b32 s{s}, v{t}, 63")
    g.nop(2)

def row_allreduce(g, t, op="add"):
    ins = "v_add_f32_dpp" if op == "add" else "v_max_f32_dpp"
    for lv in (8, 4, 2, 1):
        g.nop(2)
        g(f"{ins} v{t}, v{t}, v{t} row_ror:{lv} {DPPM}")

def bf16r(g, dst, src):
    g(f"v_cvt_pk_bf16_f32 v{dst}, v{src}, v{src}")
    g(f"v_and_b32 v{dst}, 0xffff0000, v{dst}")

def xrow_allreduce(g, regs, tmps):
    for swp in ("v_permlane32_swap_b32", "v_permlane16_swap_b32"):
        for r, t in zip(regs, tmps):
            g(f"v_mov_b32 v{t}, v{r}")
        g.nop(2)
        for r, t in zip(regs, tmps):
            g(f"{swp} v{t}, v{r}")
        for r, t in zip(regs, tmps):
            g(f"v_add_f32 v{r}, v{t}, v{r}")

def layernorm(g, X, P, T, s_a, s_b):
    t0, t1, t2, t3, t4 = T, T+1, T+2, T+3, T+4
    g(f"v_add_f32 v{t0}, v{X[0]}, v{X[1]}")
    g(f"v_add_f32 v{t1}, v{X[2]}, v{X[3]}")
    g(f"v_add_f32 v{t2}, v{X[4]}, v{X[5]}")
    g(f"v_add_f32 v{t3}, v{X[6]}, v{X[7]}")
    g(f"v_add_f32 v{t0}, v{t0}, v{t1}")
    g(f"v_add_f32 v{t2}, v{t2}, v{t3}")
    g(f"v_add_f32 v{t0}, v{t0}, v{t2}")
    allreduce_to_sgpr(g, t0, s_a)
    g(f"v_mov_b32 v{t4}, s{s_a}")
    g(f"v_mul_f32 v{t4}, 0x3b000000, v{t4}")
    g(f"v_sub_f32 v{t0}, v{X[0]}, v{t4}")
    g(f"v_mul_f32 v{t1}, v{t0}, v{t0}")
    for i in range(1, 8):
        g(f"v_sub_f32 v{t0}, v{X[i]}, v{t4}")
        g(f"v_fmac_f32 v{t1}, v{t0}, v{t0}")
    allreduce_to_sgpr(g, t1, s_b)
    g(f"v_mov_b32 v{t1}, s{s_b}")
    g(f"v_mul_f32 v{t1}, 0x3b000000, v{t1}")
    bf16r(g, t1, t1)
    g(f"v_add_f32 v{t1}, 0x3727c5ac, v{t1}")
    bf16r(g, t1, t1)
    g(f"v_sqrt_f32 v{t1}, v{t1}")
    g.nop(1)
    bf16r(g, t1, t1)
    g(f"v_rcp_f32 v{t2}, v{t1}")
    bf16r(g, t4, t4)
    for i in range(8):
        g(f"v_sub_f32 v{t0}, v{X[i]}, v{t4}")
        bf16r(g, t0, t0)
        g(f"v_mul_f32 v{t3}, v{t0}, v{t2}")
        g(f"v_fma_f32 v{t0}, -v{t3}, v{t1}, v{t0}")
        g(f"v_fma_f32 v{X[i]}, v{t0}, v{t2}, v{t3}")
    for i in range(4):
        g(f"v_cvt_pk_bf16_f32 v{P+i}, v{X[2*i]}, v{X[2*i+1]}")

def unpack8(g, src, X):
    for i in range(4):
        g(f"v_lshlrev_b32 v{X[2*i]}, 16, v{src+i}")
        g(f"v_and_b32 v{X[2*i+1]}, 0xffff0000, v{src+i}")

WS_PART = 0x0
WS_H    = 0x80000
WS_XN2  = 0x84000
WS_OACC = 0x88000
WS_SIZE = 0x200000

L_XN = 0
L_QP = 1024
L_MAX = 9216
L_SUM = 9280
L_FLAG = 9344
L_OP = 10240
L_WP = 18432
L_FIN = 18432
K1_LDS = 51200

def srd(g, d, lo, hi, nbytes):
    g(f"s_mov_b32 s{d}, s{lo}")
    g(f"s_and_b32 s{d+1}, s{hi}, 0xffff")
    g(f"s_mov_b32 s{d+2}, {nbytes}")
    g(f"s_mov_b32 s{d+3}, 0x00020000")

def srd_off(g, d, lo, hi, soff, nbytes):
    g(f"s_add_u32 s{d}, s{lo}, s{soff}")
    g(f"s_addc_u32 s{d+1}, s{hi}, 0")
    g(f"s_and_b32 s{d+1}, s{d+1}, 0xffff")
    g(f"s_mov_b32 s{d+2}, {nbytes}")
    g(f"s_mov_b32 s{d+3}, 0x00020000")

def gen_k1(g, NT="", DEPTH=16, INTERLEAVE=False, STAMP=False, KFIRST=0, TOUCH=False):
    nt = (" " + NT) if NT else ""
    def stamp(idx):
        if not STAMP: return
        g(f"s_memrealtime s[96:97]")
        g("s_waitcnt lgkmcnt(0)")
        g(f"v_mov_b32 v126, s96")
        g(f"v_mov_b32 v127, s97")
        g(f"s_lshl_b32 s98, s2, 7")
        g(f"s_add_u32 s98, s98, {0x90000 + idx*8}")
        g(f"s_lshl_b32 s99, s20, 12")
        g(f"s_lshl_b32 s99, s99, 3")
        g(f"s_add_u32 s98, s98, s99")
        g(f"v_mov_b32 v125, 0")
        g(f"buffer_store_dwordx2 v[126:127], v125, s[44:47], s98 offen")
        g.vm.append("stamp")
    g.raw(".globl attn_kernel")
    g.raw(".p2align 8")
    g.raw(".type attn_kernel,@function")
    g.label("attn_kernel")
    g("s_cmp_ge_u32 s2, 256")
    g("s_cbranch_scc1 L1_end")
    if STAMP:
        g("s_memrealtime s[100:101]")
    g("s_load_dwordx4 s[4:7], s[0:1], 0")
    g("s_load_dwordx4 s[8:11], s[0:1], 16")
    g("s_load_dwordx2 s[12:13], s[0:1], 32")
    g("s_load_dwordx4 s[16:19], s[0:1], 80")
    g("v_lshrrev_b32 v5, 6, v0")
    g("v_and_b32 v1, 63, v0")
    g("v_and_b32 v2, 15, v0")
    g("v_bfe_u32 v3, v0, 4, 2")
    g("v_readfirstlane_b32 s20, v5")
    g("s_and_b32 s21, s2, 31")
    g("s_lshr_b32 s22, s2, 5")
    g("s_mov_b32 s64, 0x00010001")
    g("s_mov_b32 s65, 0x00010001")
    for i in range(1, 16):
        g(f"s_lshl_b64 s[{64+2*i}:{65+2*i}], s[64:65], {i}")
    g("v_lshlrev_b32 v5, 4, v1")
    if INTERLEAVE:
        g("s_lshl_b32 s56, s20, 10")
    else:
        g("s_lshl_b32 s56, s20, 16")
    g("v_add_u32 v4, s56, v5")
    g("s_lshl_b32 s56, s20, 18")
    g("v_lshlrev_b32 v6, 13, v3")
    g("v_lshlrev_b32 v7, 4, v2")
    g("v_add3_u32 v6, v6, v7, s56")
    g("s_waitcnt lgkmcnt(0)")
    if STAMP:
        g("s_memrealtime vcc")
    g("s_lshl_b32 s56, s22, 10")
    srd_off(g, 40, 4, 5, 56, 1024)
    g("s_lshl_b32 s56, s21, 8")
    g("s_sub_u32 s57, 0x400000, s56")
    g("s_add_u32 s32, s10, s56")
    g("s_addc_u32 s33, s11, 0")
    g("s_and_b32 s33, s33, 0xffff")
    g("s_mov_b32 s34, s57")
    g("s_mov_b32 s35, 0x00020000")
    g("s_lshl_b32 s56, s2, 20")
    srd_off(g, 24, 6, 7, 56, 0x100000)
    srd_off(g, 28, 8, 9, 56, 0x100000)
    g("s_lshl_b32 s56, s21, 17")
    srd_off(g, 36, 12, 13, 56, 0x20000)
    srd(g, 44, 18, 19, WS_SIZE)
    srd(g, 48, 16, 17, 256)
    def issue_xwq():
        g.issue("buffer_load_dwordx4 v[24:27], v5, s[40:43], 0 offen", "x")
        for i in range(8):
            g(f"s_mov_b32 s57, {i*32768}")
            g.issue(f"buffer_load_dwordx4 {vr(32+4*i,4)}, v6, s[32:35], s57 offen", "wq")
    def touch():
        g.issue("buffer_load_dword v20, v5, s[28:31], 0 offen nt", "touch")
        g.issue("buffer_load_dword v21, v5, s[36:39], 0 offen", "touch")
        g.issue("buffer_load_dword v22, v5, s[44:47], 0 offen", "touch")
    if KFIRST == 0:
        if TOUCH: touch()
        issue_xwq()

    stamp(0)
    if STAMP:
        g("v_mov_b32 v126, s100")
        g("v_mov_b32 v127, s101")
        g("s_add_u32 s98, s98, 56")
        g("buffer_store_dwordx2 v[126:127], v125, s[44:47], s98 offen")
        g.vm.append("stamp")
        g("v_mov_b32 v126, vcc_lo")
        g("v_mov_b32 v127, vcc_hi")
        g("s_add_u32 s98, s98, 8")
        g("buffer_store_dwordx2 v[126:127], v125, s[44:47], s98 offen")
        g.vm.append("stamp")
    RING = 64
    def slot(n):
        return RING + 4 * (n % DEPTH)
    cur_soff = [None]
    def issue_stream(n):
        if n < 128:
            srdn = 24 if n < 64 else 28
            i = n % 64
            if INTERLEAVE:
                so, imm = i * 16384, 0
            else:
                so, imm = (i >> 2) * 4096, (i & 3) * 1024
            if so == 0:
                sop = "0"
            else:
                if cur_soff[0] != so:
                    g(f"s_mov_b32 s58, {so}")
                    cur_soff[0] = so
                sop = "s58"
            off = f" offset:{imm}" if imm else ""
            g.issue(f"buffer_load_dwordx4 {vr(slot(n),4)}, v4, {sr(srdn,4)}, {sop} offen{off}{nt}", ("s", n))
        elif n < 136:
            j = n - 128
            if j == 0:
                g("s_lshl_b32 s59, s20, 13")
            if j == 4:
                g("s_add_u32 s59, s59, 4096")
            off = f" offset:{(j&3)*1024}" if (j & 3) else ""
            g.issue(f"buffer_load_dwordx4 {vr(32+4*j,4)}, v5, s[36:39], s59 offen{off}", "wo")
    for n in range(DEPTH):
        if KFIRST and n == KFIRST:
            if TOUCH: touch()
            issue_xwq()
        issue_stream(n)

    g.wait_vm("x")
    X = list(range(16, 24))
    unpack8(g, 24, X)
    layernorm(g, X, 8, 24, 60, 61)
    g(f"ds_write_b128 v5, v[8:11] offset:{L_XN}")
    g("s_lshl_b32 s56, s20, 6")
    g("v_lshlrev_b32 v7, 1, v3")
    g("v_add_u32 v7, s56, v7")
    g("s_waitcnt lgkmcnt(0)")
    for i in range(8):
        g(f"ds_read_u16 v{16+i}, v7 offset:{L_XN + i*8}")
    for e in range(8):
        g(f"v_mov_b32 v{24+e}, 0")
    g("s_waitcnt lgkmcnt(0)")
    for i in range(8):
        g(f"v_lshlrev_b32 v{8+i}, 16, v{16+i}")
    g.wait_vm("wq")
    for i in range(8):
        for e in range(4):
            g(f"v_dot2c_f32_bf16 v{24+2*e}, v{16+i}, v{32+4*i+e}")
            g(f"v_dot2c_f32_bf16 v{25+2*e}, v{8+i}, v{32+4*i+e}")
    g.nop(3)
    xrow_allreduce(g, list(range(24, 32)), list(range(16, 24)))
    g("s_lshl_b32 s56, s20, 9")
    g("v_lshlrev_b32 v7, 5, v2")
    g("v_add_u32 v6, s56, v7")
    g(f"ds_write_b128 v6, v[24:27] offset:{L_QP}")
    g(f"ds_write_b128 v6, v[28:31] offset:{L_QP+16}")
    g("v_lshl_add_u32 v6, v3, 11, v7")
    g("s_waitcnt lgkmcnt(0)")
    g("s_barrier")
    for k in range(4):
        g(f"ds_read_b128 {vr(32+8*k,4)}, v6 offset:{L_QP + k*512}")
        g(f"ds_read_b128 {vr(36+8*k,4)}, v6 offset:{L_QP + k*512 + 16}")
    g("s_waitcnt lgkmcnt(0)")
    for e in range(8):
        g(f"v_add_f32 v{32+e}, v{32+e}, v{40+e}")
        g(f"v_add_f32 v{48+e}, v{48+e}, v{56+e}")
    for e in range(8):
        g(f"v_add_f32 v{32+e}, v{32+e}, v{48+e}")
    xrow_allreduce(g, list(range(32, 40)), list(range(40, 48)))
    for e in range(4):
        g(f"v_cvt_pk_bf16_f32 v{8+e}, v{32+2*e}, v{33+2*e}")
    for r in range(4):
        g(f"v_mov_b32 v{12+r}, 0")

    stamp(1)
    GR = 4
    for j in range(64 // GR):
        ns = list(range(j*GR, j*GR + GR))
        g.wait_vm([("s", n) for n in ns])
        for e in range(4):
            for u, n in enumerate(ns):
                c = "0" if e == 0 else f"v{16+u}"
                g(f"v_dot2_f32_bf16 v{16+u}, v{slot(n)+e}, v{8+e}, {c}")
        for n in ns:
            issue_stream(n + DEPTH)
        for lv in (8, 4, 2, 1):
            for u in range(GR):
                g(f"v_add_f32_dpp v{16+u}, v{16+u}, v{16+u} row_ror:{lv} {DPPM}")
        for u, n in enumerate(ns):
            i, r = n % 16, n // 16
            g(f"v_cndmask_b32_e64 v{12+r}, v{12+r}, v{16+u}, s[{64+2*i}:{65+2*i}]")
    stamp(2)
    for r in range(4):
        bf16r(g, 12+r, 12+r)
        g(f"v_mul_f32 v{12+r}, 0x3db504f3, v{12+r}")
        bf16r(g, 12+r, 12+r)
    g("v_max3_f32 v16, v12, v13, v14")
    g("v_max_f32 v16, v16, v15")
    allreduce_to_sgpr(g, 16, 60, op="max")
    g("v_mov_b32 v16, s60")
    g("s_lshl_b32 s56, s20, 2")
    g("v_mov_b32 v17, s56")
    g(f"ds_write_b32 v17, v16 offset:{L_MAX}")
    g("v_lshlrev_b32 v7, 2, v2")
    g("s_waitcnt lgkmcnt(0)")
    g("s_barrier")
    g(f"ds_read_b32 v16, v7 offset:{L_MAX}")
    g("s_waitcnt lgkmcnt(0)")
    row_allreduce(g, 16, op="max")
    for r in range(4):
        g(f"v_sub_f32 v{12+r}, v{12+r}, v16")
        g(f"v_mul_f32 v{12+r}, 0x3fb8aa3b, v{12+r}")
        g(f"v_exp_f32 v{12+r}, v{12+r}")
    g.nop(1)
    g("v_add_f32 v18, v12, v13")
    g("v_add_f32 v19, v14, v15")
    g("v_add_f32 v18, v18, v19")
    allreduce_to_sgpr(g, 18, 60)
    g("v_mov_b32 v18, s60")
    g(f"ds_write_b32 v17, v18 offset:{L_SUM}")
    g("s_waitcnt lgkmcnt(0)")
    g("s_barrier")
    g(f"ds_read_b32 v18, v7 offset:{L_SUM}")
    g("s_waitcnt lgkmcnt(0)")
    row_allreduce(g, 18)
    g.nop(1)
    g("v_readlane_b32 s60, v18, 0")
    g.nop(2)
    g("v_mov_b32 v18, s60")
    g("v_rcp_f32 v19, v18")
    g.nop(1)
    for r in range(4):
        g(f"v_mul_f32 v24, v{12+r}, v19")
        g(f"v_fma_f32 v25, -v24, v18, v{12+r}")
        g(f"v_fma_f32 v24, v25, v19, v24")
        g(f"v_cvt_pk_bf16_f32 v{16+4+r}, 0, v24")
        g(f"v_cvt_pk_bf16_f32 v{12+r}, v24, 0")
    PLO, PHI = 12, 20
    for e in range(8):
        g(f"v_mov_b32 v{24+e}, 0")
    g.nop(2)
    stamp(3)
    for j in range(64 // GR):
        ns = list(range(64 + j*GR, 64 + j*GR + GR))
        g.wait_vm([("s", n) for n in ns])
        for u, n in enumerate(ns):
            i, r = (n - 64) % 16, (n - 64) // 16
            for e in range(4):
                g(f"v_dot2c_f32_bf16_dpp v{24+2*e}, v{PLO+r}, v{slot(n)+e} row_newbcast:{i} {DPPM}")
                g(f"v_dot2c_f32_bf16_dpp v{25+2*e}, v{PHI+r}, v{slot(n)+e} row_newbcast:{i} {DPPM}")
            issue_stream(n + DEPTH)
    stamp(4)
    g.nop(3)
    xrow_allreduce(g, list(range(24, 32)), list(range(8, 16)))
    g("s_lshl_b32 s56, s20, 9")
    g("v_lshlrev_b32 v7, 5, v2")
    g("v_add_u32 v6, s56, v7")
    g(f"ds_write_b128 v6, v[24:27] offset:{L_OP}")
    g(f"ds_write_b128 v6, v[28:31] offset:{L_OP+16}")
    g("v_lshrrev_b32 v6, 3, v1")
    g("v_and_b32 v7, 7, v1")
    g("s_lshl_b32 s56, s20, 5")
    g("v_lshlrev_b32 v6, 9, v6")
    g("v_lshl_add_u32 v6, v7, 2, v6")
    g("v_add_u32 v6, s56, v6")
    g("s_waitcnt lgkmcnt(0)")
    g("s_barrier")
    g(f"ds_read_b32 v8, v6 offset:{L_OP}")
    g(f"ds_read_b32 v9, v6 offset:{L_OP+4096}")
    g("s_waitcnt lgkmcnt(0)")
    g("v_add_f32 v8, v8, v9")
    g.nop(2)
    g(f"v_add_f32_dpp v8, v8, v8 row_ror:8 {DPPM}")
    xrow_allreduce(g, [8], [9])
    bf16r(g, 8, 8)
    g.nop(1)
    for j in range(8):
        g(f"v_readlane_b32 s{72+j}, v8, {j}")
    g.nop(1)
    for j in range(8):
        g(f"s_lshr_b32 s{64+j}, s{72+j}, 16")
    for e in range(8):
        g(f"v_mov_b32 v{24+e}, 0")
    g.wait_vm("wo")
    for j in range(8):
        for e in range(4):
            g(f"v_dot2c_f32_bf16 v{24+2*e}, s{64+j}, v{32+4*j+e}")
            g(f"v_dot2c_f32_bf16 v{25+2*e}, s{72+j}, v{32+4*j+e}")
    g("s_lshl_b32 s56, s20, 11")
    g("v_lshlrev_b32 v6, 5, v1")
    g("v_add_u32 v6, s56, v6")
    g.nop(2)
    g(f"ds_write_b128 v6, v[24:27] offset:{L_WP}")
    g(f"ds_write_b128 v6, v[28:31] offset:{L_WP+16}")
    g("v_and_b32 v6, 511, v0")
    g("v_lshlrev_b32 v6, 2, v6")
    g("s_waitcnt lgkmcnt(0)")
    g("s_barrier")
    g("s_cmp_ge_u32 s20, 8")
    g("s_cbranch_scc1 L1_skipred")
    for k in range(16):
        g(f"ds_read_b32 v{8+k}, v6 offset:{L_WP + k*2048}")
    g("s_waitcnt lgkmcnt(0)")
    for k in range(8):
        g(f"v_add_f32 v{8+k}, v{8+k}, v{16+k}")
    for k in range(4):
        g(f"v_add_f32 v{8+k}, v{8+k}, v{12+k}")
    g("v_add_f32 v8, v8, v9")
    g("v_add_f32 v10, v10, v11")
    g("v_add_f32 v8, v8, v10")
    g("s_lshl_b32 s56, s2, 11")
    g(f"buffer_store_dword v8, v6, s[44:47], s56 offen sc1")
    g.label("L1_skipred")
    g("s_waitcnt vmcnt(0)")
    g("s_barrier")
    g("s_cmp_lg_u32 s20, 0")
    g("s_cbranch_scc1 L1_wait_flag")
    g("s_lshl_b32 s56, s22, 2")
    g("v_mov_b32 v8, 1")
    g("v_mov_b32 v9, s56")
    g("v_cmp_eq_u32 vcc, 0, v1")
    g("s_and_saveexec_b64 s[62:63], vcc")
    g("buffer_atomic_add v8, v9, s[48:51], 0 offen sc0")
    g("s_waitcnt vmcnt(0)")
    g("s_mov_b64 exec, s[62:63]")
    g("v_readfirstlane_b32 s56, v8")
    g("v_mov_b32 v9, 0")
    g("s_cmp_eq_u32 s56, 31")
    g("s_cselect_b32 s56, 1, 0")
    g("v_mov_b32 v8, s56")
    g(f"ds_write_b32 v9, v8 offset:{L_FLAG}")
    g("s_waitcnt lgkmcnt(0)")
    g.label("L1_wait_flag")
    g("s_barrier")
    stamp(5)
    g("v_mov_b32 v9, 0")
    g(f"ds_read_b32 v8, v9 offset:{L_FLAG}")
    g("s_waitcnt lgkmcnt(0)")
    g("v_readfirstlane_b32 s56, v8")
    g("s_cmp_eq_u32 s56, 0")
    g("s_cbranch_scc1 L1_end")
    g("v_and_b32 v6, 127, v0")
    g("v_lshrrev_b32 v7, 7, v0")
    g("v_lshlrev_b32 v6, 4, v6")
    g("v_lshl_add_u32 v8, v7, 13, v6")
    g("s_lshl_b32 s56, s22, 16")
    for k in range(4):
        off = f" offset:{k*2048}" if k*2048 < 4096 and k else ""
        if k == 2:
            g("s_add_u32 s56, s56, 4096")
        off = f" offset:{(k&1)*2048}" if (k & 1) else ""
        g(f"buffer_load_dwordx4 {vr(12+4*k,4)}, v8, s[44:47], s56 offen{off} sc1")
    g("buffer_load_dwordx4 v[28:31], v5, s[40:43], 0 offen")
    g("v_lshl_add_u32 v8, v7, 11, v6")
    g("s_waitcnt vmcnt(0)")
    for e in range(4):
        g(f"v_add_f32 v{12+e}, v{12+e}, v{16+e}")
        g(f"v_add_f32 v{20+e}, v{20+e}, v{24+e}")
    for e in range(4):
        g(f"v_add_f32 v{12+e}, v{12+e}, v{20+e}")
    g(f"ds_write_b128 v8, v[12:15] offset:{L_FIN}")
    g("s_waitcnt lgkmcnt(0)")
    g("s_barrier")
    g("s_cmp_lg_u32 s20, 0")
    g("s_cbranch_scc1 L1_end")
    g("v_lshlrev_b32 v6, 5, v1")
    for k in range(8):
        g(f"ds_read_b128 {vr(32+8*k,4)}, v6 offset:{L_FIN + k*2048}")
        g(f"ds_read_b128 {vr(36+8*k,4)}, v6 offset:{L_FIN + k*2048 + 16}")
    g("s_waitcnt lgkmcnt(0)")
    for k in (0, 2, 4, 6):
        for e in range(8):
            g(f"v_add_f32 v{32+8*k+e}, v{32+8*k+e}, v{40+8*k+e}")
    for k in (0, 4):
        for e in range(8):
            g(f"v_add_f32 v{32+8*k+e}, v{32+8*k+e}, v{48+8*k+e}")
    for e in range(8):
        g(f"v_add_f32 v{32+e}, v{32+e}, v{64+e}")
    X = list(range(16, 24))
    unpack8(g, 28, X)
    for e in range(8):
        bf16r(g, 32+e, 32+e)
        g(f"v_add_f32 v{16+e}, v{16+e}, v{32+e}")
        bf16r(g, 16+e, 16+e)
    g("s_lshl_b32 s56, s22, 11")
    g(f"s_add_u32 s57, s56, {WS_H}")
    g("buffer_store_dwordx4 v[16:19], v6, s[44:47], s57 offen")
    g("buffer_store_dwordx4 v[20:23], v6, s[44:47], s57 offen offset:16")
    for e in range(4):
        g(f"v_mov_b32 v{40+e}, 0")
    g(f"s_add_u32 s57, s56, {WS_OACC}")
    g("buffer_store_dwordx4 v[40:43], v6, s[44:47], s57 offen")
    g("buffer_store_dwordx4 v[40:43], v6, s[44:47], s57 offen offset:16")
    for e in range(8):
        g(f"v_mov_b32 v{32+e}, v{16+e}")
    layernorm(g, list(range(32, 40)), 8, 24, 60, 61)
    g("s_lshl_b32 s56, s22, 10")
    g(f"s_add_u32 s57, s56, {WS_XN2}")
    g("buffer_store_dwordx4 v[8:11], v5, s[44:47], s57 offen")
    stamp(6)
    g.label("L1_end")
    g("s_endpgm")

M_X = 0
M_GU = 8192
M_ACT = 24576
M_FLAG = 25088
M_DN = 25600
K2_LDS = 58368
NWG2 = 43

def gen_k2(g):
    g.raw(".globl ffn_kernel")
    g.raw(".p2align 8")
    g.raw(".type ffn_kernel,@function")
    g.label("ffn_kernel")
    g(f"s_cmp_ge_u32 s2, {NWG2}")
    g("s_cbranch_scc1 L2_end")
    g("s_load_dwordx4 s[4:7], s[0:1], 48")
    g("s_load_dwordx4 s[8:11], s[0:1], 64")
    g("s_load_dwordx4 s[16:19], s[0:1], 80")
    g("v_lshrrev_b32 v5, 6, v0")
    g("v_and_b32 v1, 63, v0")
    g("v_readfirstlane_b32 s20, v5")
    g("s_lshr_b32 s21, s20, 3")
    g("s_and_b32 s22, s20, 7")
    g("v_and_b32 v2, 7, v1")
    g("v_lshrrev_b32 v3, 3, v1")
    g("s_lshl_b32 s56, s22, 3")
    g("v_add_u32 v4, s56, v3")
    g("s_movk_i32 s57, 22016")
    g("v_mul_lo_u32 v6, v4, s57")
    g("s_lshl_b32 s56, s2, 6")
    g("v_lshl_add_u32 v6, v2, 3, v6")
    g("v_add_u32 v6, s56, v6")
    g("v_and_b32 v7, 15, v1")
    g("v_lshrrev_b32 v8, 4, v1")
    g("s_lshl_b32 s56, s2, 15")
    g("s_lshl_b32 s57, s21, 14")
    g("s_add_u32 s56, s56, s57")
    g("s_lshl_b32 s57, s22, 7")
    g("s_add_u32 s56, s56, s57")
    g("v_lshlrev_b32 v9, 12, v8")
    g("v_lshl_add_u32 v9, v7, 3, v9")
    g("v_add_u32 v9, s56, v9")
    g("v_lshlrev_b32 v10, 4, v0")
    g("s_waitcnt lgkmcnt(0)")
    g("s_cmp_eq_u32 s21, 0")
    g("s_cselect_b32 s24, s4, s6")
    g("s_cselect_b32 s25, s5, s7")
    g("s_and_b32 s25, s25, 0xffff")
    g("s_mov_b32 s26, 1409024")
    g("s_mov_b32 s27, 0x00020000")
    srd(g, 28, 8, 9, 1409024)
    srd(g, 32, 10, 11, 8192)
    srd(g, 44, 18, 19, WS_SIZE)
    srd(g, 48, 16, 17, 256)
    g(f"s_mov_b32 s56, {WS_XN2}")
    srd_off(g, 36, 18, 19, 56, 8192)
    g.issue("buffer_load_dwordx4 v[12:15], v10, s[36:39], 0 offen", "x")
    for j in range(8):
        if j >= 2:
            g(f"s_movk_i32 s57, {j*2752}")
            g.issue(f"buffer_load_dwordx2 {vr(16+2*j,2)}, v6, s[24:27], s57 offen", "w")
        else:
            off = f" offset:{j*2752}" if j else ""
            g.issue(f"buffer_load_dwordx2 {vr(16+2*j,2)}, v6, s[24:27], 0 offen{off}", "w")
    for j in range(4):
        off = f" offset:{j*1024}" if j else ""
        g.issue(f"buffer_load_dwordx2 {vr(32+2*j,2)}, v9, s[28:31], 0 offen{off}", "d")
    g.wait_vm("x")
    g("s_cmp_ge_u32 s20, 8")
    g("s_cbranch_scc1 L2_nox")
    g(f"ds_write_b128 v10, v[12:15] offset:{M_X}")
    g.label("L2_nox")
    g("v_lshlrev_b32 v11, 4, v4")
    g("s_waitcnt lgkmcnt(0)")
    g("s_barrier")
    XP = 40
    for b in range(8):
        g(f"ds_read_b128 {vr(XP+4*b,4)}, v11 offset:{M_X + b*1024}")
    g.wait_vm("w")
    g("s_mov_b32 s60, 0x05040100")
    g("s_mov_b32 s61, 0x07060302")
    WP = 72
    for p in range(4):
        for d in range(2):
            a, b2 = 16 + 2*(2*p) + d, 16 + 2*(2*p+1) + d
            g(f"v_perm_b32 v{WP+4*p+2*d}, v{b2}, v{a}, s60")
            g(f"v_perm_b32 v{WP+4*p+2*d+1}, v{b2}, v{a}, s61")
    g("s_waitcnt lgkmcnt(0)")
    AC = 88
    for p in range(4):
        for b in range(8):
            for c in range(4):
                cc = "0" if p == 0 else f"v{AC+4*b+c}"
                g(f"v_dot2_f32_bf16 v{AC+4*b+c}, v{WP+4*p+c}, v{XP+4*b+p}, {cc}")
    g.nop(3)
    for a in range(32):
        g(f"v_add_f32_dpp v{AC+a}, v{AC+a}, v{AC+a} row_ror:8 {DPPM}")
    g.nop(2)
    for a in range(16):
        g(f"v_permlane16_swap_b32 v{AC+a}, v{AC+a+16}")
    for a in range(16):
        g(f"v_add_f32 v{AC+a}, v{AC+a}, v{AC+a+16}")
    g.nop(2)
    for a in range(8):
        g(f"v_permlane32_swap_b32 v{AC+a}, v{AC+a+8}")
    for a in range(8):
        g(f"v_add_f32 v{AC+a}, v{AC+a}, v{AC+a+8}")
    g("v_bfe_u32 v12, v1, 5, 1")
    g("v_bfe_u32 v13, v1, 4, 1")
    g("v_lshlrev_b32 v12, 8, v12")
    g("v_lshl_add_u32 v12, v13, 9, v12")
    g("v_lshl_add_u32 v12, v2, 4, v12")
    g("s_lshl_b32 s56, s22, 1")
    g("s_add_u32 s56, s56, s21")
    g("s_lshl_b32 s56, s56, 10")
    g("v_add_u32 v12, s56, v12")
    g(f"ds_write_b128 v12, {vr(AC,4)} offset:{M_GU}")
    g(f"ds_write_b128 v12, {vr(AC+4,4)} offset:{M_GU+128}")
    g("v_lshlrev_b32 v12, 2, v0")
    g("s_waitcnt lgkmcnt(0)")
    g("s_barrier")
    g("s_cmp_ge_u32 s20, 4")
    g("s_cbranch_scc1 L2_noact")
    for wk in range(8):
        g(f"ds_read_b32 v{40+wk}, v12 offset:{M_GU + wk*2048}")
        g(f"ds_read_b32 v{48+wk}, v12 offset:{M_GU + wk*2048 + 1024}")
    g("s_waitcnt lgkmcnt(0)")
    for base in (40, 48):
        for k in range(4):
            g(f"v_add_f32 v{base+k}, v{base+k}, v{base+4+k}")
        g(f"v_add_f32 v{base}, v{base}, v{base+1}")
        g(f"v_add_f32 v{base+2}, v{base+2}, v{base+3}")
        g(f"v_add_f32 v{base}, v{base}, v{base+2}")
        bf16r(g, base, base)
    g("v_mul_f32 v41, 0xbfb8aa3b, v40")
    g("v_exp_f32 v41, v41")
    g.nop(1)
    g("v_add_f32 v41, 1.0, v41")
    g("v_rcp_f32 v42, v41")
    g.nop(1)
    g("v_mul_f32 v43, v40, v42")
    g("v_fma_f32 v44, -v43, v41, v40")
    g("v_fma_f32 v43, v44, v42, v43")
    g("v_mul_f32 v45, v40, v42")
    g("v_cmp_u_f32 vcc, v43, v43")
    g.nop(2)
    g("v_cndmask_b32 v43, v43, v45, vcc")
    bf16r(g, 43, 43)
    g("v_mul_f32 v43, v43, v48")
    g("v_cvt_pk_bf16_f32 v43, v43, v43")
    g("v_lshrrev_b32 v12, 1, v12")
    g(f"ds_write_b16 v12, v43 offset:{M_ACT}")
    g("s_waitcnt lgkmcnt(0)")
    g.label("L2_noact")
    g("s_barrier")
    g("s_lshl_b32 s56, s21, 5")
    g("v_lshlrev_b32 v12, 3, v8")
    g("v_add_u32 v12, s56, v12")
    AP = 40
    for b in range(8):
        g(f"ds_read_b64 {vr(AP+2*b,2)}, v12 offset:{M_ACT + b*64}")
    g.wait_vm("d")
    for p in range(2):
        for d in range(2):
            a, b2 = 32 + 2*(2*p) + d, 32 + 2*(2*p+1) + d
            g(f"v_perm_b32 v{WP+4*p+2*d}, v{b2}, v{a}, s60")
            g(f"v_perm_b32 v{WP+4*p+2*d+1}, v{b2}, v{a}, s61")
    g("s_waitcnt lgkmcnt(0)")
    for p in range(2):
        for b in range(8):
            for c in range(4):
                cc = "0" if p == 0 else f"v{AC+4*b+c}"
                g(f"v_dot2_f32_bf16 v{AC+4*b+c}, v{WP+4*p+c}, v{AP+2*b+p}, {cc}")
    g.nop(3)
    for a in range(16):
        g(f"v_permlane16_swap_b32 v{AC+a}, v{AC+a+16}")
    for a in range(16):
        g(f"v_add_f32 v{AC+a}, v{AC+a}, v{AC+a+16}")
    g.nop(2)
    for a in range(8):
        g(f"v_permlane32_swap_b32 v{AC+a}, v{AC+a+8}")
    for a in range(8):
        g(f"v_add_f32 v{AC+a}, v{AC+a}, v{AC+a+8}")
    g("v_bfe_u32 v12, v1, 5, 1")
    g("v_bfe_u32 v13, v1, 4, 1")
    g("v_lshlrev_b32 v12, 12, v12")
    g("v_lshl_add_u32 v12, v13, 13, v12")
    g("v_lshl_add_u32 v12, v7, 4, v12")
    g("s_lshl_b32 s56, s21, 14")
    g("s_lshl_b32 s57, s22, 8")
    g("s_add_u32 s56, s56, s57")
    g("v_add_u32 v12, s56, v12")
    g(f"ds_write_b128 v12, {vr(AC,4)} offset:{M_DN}")
    g(f"ds_write_b128 v12, {vr(AC+4,4)} offset:{M_DN+2048}")
    g("v_lshlrev_b32 v12, 2, v0")
    g("s_waitcnt lgkmcnt(0)")
    g("s_barrier")
    for j in range(4):
        g(f"ds_read_b32 v{40+j}, v12 offset:{M_DN + j*4096}")
        g(f"ds_read_b32 v{44+j}, v12 offset:{M_DN + 16384 + j*4096}")
    g("s_waitcnt lgkmcnt(0)")
    g(f"s_mov_b32 s56, {WS_OACC}")
    for j in range(4):
        g(f"v_add_f32 v{40+j}, v{40+j}, v{44+j}")
        if j:
            g("s_add_u32 s56, s56, 4096")
        g(f"buffer_atomic_add_f32 v{40+j}, v12, s[44:47], s56 offen")
    g("s_waitcnt vmcnt(0)")
    g("s_barrier")
    g("s_cmp_lg_u32 s20, 0")
    g("s_cbranch_scc1 L2_wait_flag")
    g("v_mov_b32 v8, 1")
    g("v_mov_b32 v9, 0")
    g("v_cmp_eq_u32 vcc, 0, v1")
    g("s_and_saveexec_b64 s[62:63], vcc")
    g("buffer_atomic_add v8, v9, s[48:51], 0 offen sc0")
    g("s_waitcnt vmcnt(0)")
    g("s_mov_b64 exec, s[62:63]")
    g("v_readfirstlane_b32 s56, v8")
    g(f"s_cmp_eq_u32 s56, {NWG2-1}")
    g("s_cselect_b32 s56, 1, 0")
    g("v_mov_b32 v8, s56")
    g(f"ds_write_b32 v9, v8 offset:{M_FLAG}")
    g("s_waitcnt lgkmcnt(0)")
    g.label("L2_wait_flag")
    g("s_barrier")
    g("v_mov_b32 v9, 0")
    g(f"ds_read_b32 v8, v9 offset:{M_FLAG}")
    g("s_waitcnt lgkmcnt(0)")
    g("v_readfirstlane_b32 s56, v8")
    g("s_cmp_eq_u32 s56, 0")
    g("s_cbranch_scc1 L2_end")
    g(f"s_mov_b32 s56, {WS_OACC}")
    g(f"s_mov_b32 s57, {WS_H}")
    g("buffer_load_dwordx4 v[12:15], v10, s[44:47], s56 offen sc0 sc1")
    g("buffer_load_dwordx4 v[16:19], v10, s[44:47], s57 offen")
    g("v_lshlrev_b32 v11, 3, v0")
    g("s_waitcnt vmcnt(0)")
    for e in range(4):
        bf16r(g, 12+e, 12+e)
        g(f"v_add_f32 v{12+e}, v{12+e}, v{16+e}")
    g("v_cvt_pk_bf16_f32 v20, v12, v13")
    g("v_cvt_pk_bf16_f32 v21, v14, v15")
    g("buffer_store_dwordx2 v[20:21], v11, s[32:35], 0 offen")
    g.label("L2_end")
    g("s_endpgm")

def kd(name, vgpr, sgpr):
    return f""".amdhsa_kernel {name}
  .amdhsa_next_free_vgpr {vgpr}
  .amdhsa_next_free_sgpr {sgpr}
  .amdhsa_accum_offset {vgpr}
  .amdhsa_group_segment_fixed_size 0
  .amdhsa_kernarg_size 96
  .amdhsa_user_sgpr_count 2
  .amdhsa_user_sgpr_kernarg_segment_ptr 1
  .amdhsa_system_sgpr_workgroup_id_x 1
.end_amdhsa_kernel
"""

HEADER = open("sequential_preLN__mha_block_cached__swiglu_ffn__decode.s.ref").read().split("; Override launch")[0]

def build(NT="", DEPTH=16, INTERLEAVE=False, STAMP=False, KFIRST=0, TOUCH=False):
    g1 = G(); gen_k1(g1, NT=NT, DEPTH=DEPTH, INTERLEAVE=INTERLEAVE, STAMP=STAMP, KFIRST=KFIRST, TOUCH=TOUCH)
    g2 = G(); gen_k2(g2)
    out = HEADER
    out += f"; @launch kernel=attn_kernel grid=(256,1,1) block=(1024,1,1) lds={K1_LDS}\n"
    out += f"; @launch kernel=ffn_kernel grid=({NWG2},1,1) block=(1024,1,1) lds={K2_LDS}\n"
    out += '.amdgcn_target "amdgcn-amd-amdhsa--gfx950"\n.text\n'
    out += "\n".join(g1.lines) + "\n" + "\n".join(g2.lines) + "\n"
    out += '.section .rodata,"a"\n.p2align 6\n'
    out += kd("attn_kernel", 128, 102)
    out += ".p2align 6\n"
    out += kd("ffn_kernel", 128, 100)
    return out

if __name__ == "__main__":
    import argparse
    ap = argparse.ArgumentParser()
    ap.add_argument("-o", default="sequential_preLN__mha_block_cached__swiglu_ffn__decode.s")
    ap.add_argument("--nt", default="nt")
    ap.add_argument("--stamp", action="store_true")
    ap.add_argument("--kfirst", type=int, default=0)
    ap.add_argument("--touch", action="store_true")
    ap.add_argument("--il", action="store_true")
    ap.add_argument("--depth", type=int, default=16)
    a = ap.parse_args()
    open(a.o, "w").write(build(NT=a.nt, DEPTH=a.depth, INTERLEAVE=a.il, STAMP=a.stamp, KFIRST=a.kfirst, TOUCH=a.touch))
    print("wrote", a.o)
```

```python
import sys

class G:
    def __init__(self):
        self.lines = []
        self.vm = []
    def __call__(self, s):
        self.lines.append("  " + s)
    def label(self, n):
        self.lines.append(n + ":")
    def raw(self, s):
        self.lines.append(s)
    def issue(self, instr, tag):
        self(instr)
        self.vm.append(tag)
    def wait_vm(self, tags):
        if not isinstance(tags, (list, tuple, set)):
            tags = [tags]
        last = -1
        for i, t in enumerate(self.vm):
            if t in tags:
                last = i
        if last < 0:
            return
        n = len(self.vm) - 1 - last
        assert n <= 63
        self(f"s_waitcnt vmcnt({n})")
        self.vm = self.vm[last + 1:]
    def wait_all_vm(self):
        self("s_waitcnt vmcnt(0)")
        self.vm = []
    def nop(self, n):
        if n > 0:
            self(f"s_nop {n-1}")

DPPM = "row_mask:0xf bank_mask:0xf"

def vr(a, n):
    return f"v[{a}:{a+n-1}]"
def sr(a, n):
    return f"s[{a}:{a+n-1}]"

def allreduce_to_sgpr(g, t, s, op="add"):
    ins = "v_add_f32_dpp" if op == "add" else "v_max_f32_dpp"
    for lv in (8, 4, 2, 1):
        g.nop(2)
        g(f"{ins} v{t}, v{t}, v{t} row_ror:{lv} {DPPM}")
    g.nop(2)
    g(f"{ins} v{t}, v{t}, v{t} row_bcast:15 row_mask:0xa bank_mask:0xf")
    g.nop(2)
    g(f"{ins} v{t}, v{t}, v{t} row_bcast:31 row_mask:0xc bank_mask:0xf")
    g.nop(1)
    g(f"v_readlane_b32 s{s}, v{t}, 63")
    g.nop(2)

def row_allreduce(g, t, op="add"):
    ins = "v_add_f32_dpp" if op == "add" else "v_max_f32_dpp"
    for lv in (8, 4, 2, 1):
        g.nop(2)
        g(f"{ins} v{t}, v{t}, v{t} row_ror:{lv} {DPPM}")

def bf16r(g, dst, src):
    g(f"v_cvt_pk_bf16_f32 v{dst}, v{src}, v{src}")
    g(f"v_and_b32 v{dst}, 0xffff0000, v{dst}")

def xrow_allreduce(g, regs, tmps):
    for swp in ("v_permlane32_swap_b32", "v_permlane16_swap_b32"):
        for r, t in zip(regs, tmps):
            g(f"v_mov_b32 v{t}, v{r}")
        g.nop(2)
        for r, t in zip(regs, tmps):
            g(f"{swp} v{t}, v{r}")
        for r, t in zip(regs, tmps):
            g(f"v_add_f32 v{r}, v{t}, v{r}")

def layernorm(g, X, P, T, s_a, s_b):
    t0, t1, t2, t3, t4 = T, T+1, T+2, T+3, T+4
    g(f"v_add_f32 v{t0}, v{X[0]}, v{X[1]}")
    g(f"v_add_f32 v{t1}, v{X[2]}, v{X[3]}")
    g(f"v_add_f32 v{t2}, v{X[4]}, v{X[5]}")
    g(f"v_add_f32 v{t3}, v{X[6]}, v{X[7]}")
    g(f"v_add_f32 v{t0}, v{t0}, v{t1}")
    g(f"v_add_f32 v{t2}, v{t2}, v{t3}")
    g(f"v_add_f32 v{t0}, v{t0}, v{t2}")
    allreduce_to_sgpr(g, t0, s_a)
    g(f"v_mov_b32 v{t4}, s{s_a}")
    g(f"v_mul_f32 v{t4}, 0x3b000000, v{t4}")
    g(f"v_sub_f32 v{t0}, v{X[0]}, v{t4}")
    g(f"v_mul_f32 v{t1}, v{t0}, v{t0}")
    for i in range(1, 8):
        g(f"v_sub_f32 v{t0}, v{X[i]}, v{t4}")
        g(f"v_fmac_f32 v{t1}, v{t0}, v{t0}")
    allreduce_to_sgpr(g, t1, s_b)
    g(f"v_mov_b32 v{t1}, s{s_b}")
    g(f"v_mul_f32 v{t1}, 0x3b000000, v{t1}")
    bf16r(g, t1, t1)
    g(f"v_add_f32 v{t1}, 0x3727c5ac, v{t1}")
    bf16r(g, t1, t1)
    g(f"v_sqrt_f32 v{t1}, v{t1}")
    g.nop(1)
    bf16r(g, t1, t1)
    g(f"v_rcp_f32 v{t2}, v{t1}")
    bf16r(g, t4, t4)
    for i in range(8):
        g(f"v_sub_f32 v{t0}, v{X[i]}, v{t4}")
        bf16r(g, t0, t0)
        g(f"v_mul_f32 v{t3}, v{t0}, v{t2}")
        g(f"v_fma_f32 v{t0}, -v{t3}, v{t1}, v{t0}")
        g(f"v_fma_f32 v{X[i]}, v{t0}, v{t2}, v{t3}")
    for i in range(4):
        g(f"v_cvt_pk_bf16_f32 v{P+i}, v{X[2*i]}, v{X[2*i+1]}")

def unpack8(g, src, X):
    for i in range(4):
        g(f"v_lshlrev_b32 v{X[2*i]}, 16, v{src+i}")
        g(f"v_and_b32 v{X[2*i+1]}, 0xffff0000, v{src+i}")

WS_PART = 0x0
WS_H    = 0x80000
WS_XN2  = 0x84000
WS_OACC = 0x88000
WS_SIZE = 0x200000

L_XN = 0
L_QP = 1024
L_MAX = 9216
L_SUM = 9280
L_FLAG = 9344
L_OP = 10240
L_WP = 18432
L_FIN = 18432
K1_LDS = 51200

def srd(g, d, lo, hi, nbytes):
    g(f"s_mov_b32 s{d}, s{lo}")
    g(f"s_and_b32 s{d+1}, s{hi}, 0xffff")
    g(f"s_mov_b32 s{d+2}, {nbytes}")
    g(f"s_mov_b32 s{d+3}, 0x00020000")

def srd_off(g, d, lo, hi, soff, nbytes):
    g(f"s_add_u32 s{d}, s{lo}, s{soff}")
    g(f"s_addc_u32 s{d+1}, s{hi}, 0")
    g(f"s_and_b32 s{d+1}, s{d+1}, 0xffff")
    g(f"s_mov_b32 s{d+2}, {nbytes}")
    g(f"s_mov_b32 s{d+3}, 0x00020000")

def gen_k1(g, NT="", DEPTH=16, INTERLEAVE=False, STAMP=False, KFIRST=0, TOUCH=False, FUSED=False):
    nt = (" " + NT) if NT else ""
    def stamp(idx):
        if not STAMP: return
        g(f"s_memrealtime s[96:97]")
        g("s_waitcnt lgkmcnt(0)")
        g(f"v_mov_b32 v126, s96")
        g(f"v_mov_b32 v127, s97")
        g(f"s_lshl_b32 s98, s2, 7")
        g(f"s_add_u32 s98, s98, {0x90000 + idx*8}")
        g(f"s_lshl_b32 s99, s20, 12")
        g(f"s_lshl_b32 s99, s99, 3")
        g(f"s_add_u32 s98, s98, s99")
        g(f"v_mov_b32 v125, 0")
        g(f"buffer_store_dwordx2 v[126:127], v125, s[44:47], s98 offen")
        g.vm.append("stamp")
    g.raw(".globl attn_kernel")
    g.raw(".p2align 8")
    g.raw(".type attn_kernel,@function")
    g.label("attn_kernel")
    g("s_cmp_ge_u32 s2, 256")
    g("s_cbranch_scc1 L1_end")
    if STAMP:
        g("s_memrealtime s[100:101]")
    g("s_load_dwordx4 s[4:7], s[0:1], 0")
    g("s_load_dwordx4 s[8:11], s[0:1], 16")
    g("s_load_dwordx2 s[12:13], s[0:1], 32")
    g("s_load_dwordx4 s[16:19], s[0:1], 80")
    g("v_lshrrev_b32 v5, 6, v0")
    g("v_and_b32 v1, 63, v0")
    g("v_and_b32 v2, 15, v0")
    g("v_bfe_u32 v3, v0, 4, 2")
    g("v_readfirstlane_b32 s20, v5")
    g("s_and_b32 s21, s2, 31")
    g("s_lshr_b32 s22, s2, 5")
    g("s_mov_b32 s64, 0x00010001")
    g("s_mov_b32 s65, 0x00010001")
    for i in range(1, 16):
        g(f"s_lshl_b64 s[{64+2*i}:{65+2*i}], s[64:65], {i}")
    g("v_lshlrev_b32 v5, 4, v1")
    if INTERLEAVE:
        g("s_lshl_b32 s56, s20, 10")
    else:
        g("s_lshl_b32 s56, s20, 16")
    g("v_add_u32 v4, s56, v5")
    g("s_lshl_b32 s56, s20, 18")
    g("v_lshlrev_b32 v6, 13, v3")
    g("v_lshlrev_b32 v7, 4, v2")
    g("v_add3_u32 v6, v6, v7, s56")
    g("s_waitcnt lgkmcnt(0)")
    if STAMP:
        g("s_memrealtime vcc")
    g("s_lshl_b32 s56, s22, 10")
    srd_off(g, 40, 4, 5, 56, 1024)
    g("s_lshl_b32 s56, s21, 8")
    g("s_sub_u32 s57, 0x400000, s56")
    g("s_add_u32 s32, s10, s56")
    g("s_addc_u32 s33, s11, 0")
    g("s_and_b32 s33, s33, 0xffff")
    g("s_mov_b32 s34, s57")
    g("s_mov_b32 s35, 0x00020000")
    g("s_lshl_b32 s56, s2, 20")
    srd_off(g, 24, 6, 7, 56, 0x100000)
    srd_off(g, 28, 8, 9, 56, 0x100000)
    g("s_lshl_b32 s56, s21, 17")
    srd_off(g, 36, 12, 13, 56, 0x20000)
    srd(g, 44, 18, 19, WS_SIZE)
    srd(g, 48, 16, 17, 256)
    def issue_xwq():
        g.issue("buffer_load_dwordx4 v[24:27], v5, s[40:43], 0 offen", "x")
        for i in range(8):
            g(f"s_mov_b32 s57, {i*32768}")
            g.issue(f"buffer_load_dwordx4 {vr(32+4*i,4)}, v6, s[32:35], s57 offen", "wq")
    def touch():
        g.issue("buffer_load_dword v20, v5, s[28:31], 0 offen nt", "touch")
        g.issue("buffer_load_dword v21, v5, s[36:39], 0 offen", "touch")
        g.issue("buffer_load_dword v22, v5, s[44:47], 0 offen", "touch")
    if KFIRST == 0:
        if TOUCH: touch()
        issue_xwq()

    stamp(0)
    if STAMP:
        g("v_mov_b32 v126, s100")
        g("v_mov_b32 v127, s101")
        g("s_add_u32 s98, s98, 56")
        g("buffer_store_dwordx2 v[126:127], v125, s[44:47], s98 offen")
        g.vm.append("stamp")
        g("v_mov_b32 v126, vcc_lo")
        g("v_mov_b32 v127, vcc_hi")
        g("s_add_u32 s98, s98, 8")
        g("buffer_store_dwordx2 v[126:127], v125, s[44:47], s98 offen")
        g.vm.append("stamp")
    RING = 64
    def slot(n):
        return RING + 4 * (n % DEPTH)
    cur_soff = [None]
    def issue_stream(n):
        if n < 128:
            srdn = 24 if n < 64 else 28
            i = n % 64
            if INTERLEAVE:
                so, imm = i * 16384, 0
            else:
                so, imm = (i >> 2) * 4096, (i & 3) * 1024
            if so == 0:
                sop = "0"
            else:
                if cur_soff[0] != so:
                    g(f"s_mov_b32 s58, {so}")
                    cur_soff[0] = so
                sop = "s58"
            off = f" offset:{imm}" if imm else ""
            g.issue(f"buffer_load_dwordx4 {vr(slot(n),4)}, v4, {sr(srdn,4)}, {sop} offen{off}{nt}", ("s", n))
        elif n < 136:
            j = n - 128
            if j == 0:
                g("s_lshl_b32 s59, s20, 13")
            if j == 4:
                g("s_add_u32 s59, s59, 4096")
            off = f" offset:{(j&3)*1024}" if (j & 3) else ""
            g.issue(f"buffer_load_dwordx4 {vr(32+4*j,4)}, v5, s[36:39], s59 offen{off}", "wo")
    for n in range(DEPTH):
        if KFIRST and n == KFIRST:
            if TOUCH: touch()
            issue_xwq()
        issue_stream(n)

    g.wait_vm("x")
    X = list(range(16, 24))
    unpack8(g, 24, X)
    layernorm(g, X, 8, 24, 60, 61)
    g(f"ds_write_b128 v5, v[8:11] offset:{L_XN}")
    g("s_lshl_b32 s56, s20, 6")
    g("v_lshlrev_b32 v7, 1, v3")
    g("v_add_u32 v7, s56, v7")
    g("s_waitcnt lgkmcnt(0)")
    for i in range(8):
        g(f"ds_read_u16 v{16+i}, v7 offset:{L_XN + i*8}")
    for e in range(8):
        g(f"v_mov_b32 v{24+e}, 0")
    g("s_waitcnt lgkmcnt(0)")
    for i in range(8):
        g(f"v_lshlrev_b32 v{8+i}, 16, v{16+i}")
    g.wait_vm("wq")
    for i in range(8):
        for e in range(4):
            g(f"v_dot2c_f32_bf16 v{24+2*e}, v{16+i}, v{32+4*i+e}")
            g(f"v_dot2c_f32_bf16 v{25+2*e}, v{8+i}, v{32+4*i+e}")
    g.nop(3)
    xrow_allreduce(g, list(range(24, 32)), list(range(16, 24)))
    g("s_lshl_b32 s56, s20, 9")
    g("v_lshlrev_b32 v7, 5, v2")
    g("v_add_u32 v6, s56, v7")
    g(f"ds_write_b128 v6, v[24:27] offset:{L_QP}")
    g(f"ds_write_b128 v6, v[28:31] offset:{L_QP+16}")
    g("v_lshl_add_u32 v6, v3, 11, v7")
    g("s_waitcnt lgkmcnt(0)")
    g("s_barrier")
    for k in range(4):
        g(f"ds_read_b128 {vr(32+8*k,4)}, v6 offset:{L_QP + k*512}")
        g(f"ds_read_b128 {vr(36+8*k,4)}, v6 offset:{L_QP + k*512 + 16}")
    g("s_waitcnt lgkmcnt(0)")
    for e in range(8):
        g(f"v_add_f32 v{32+e}, v{32+e}, v{40+e}")
        g(f"v_add_f32 v{48+e}, v{48+e}, v{56+e}")
    for e in range(8):
        g(f"v_add_f32 v{32+e}, v{32+e}, v{48+e}")
    xrow_allreduce(g, list(range(32, 40)), list(range(40, 48)))
    for e in range(4):
        g(f"v_cvt_pk_bf16_f32 v{8+e}, v{32+2*e}, v{33+2*e}")
    for r in range(4):
        g(f"v_mov_b32 v{12+r}, 0")

    stamp(1)
    GR = 4
    for j in range(64 // GR):
        ns = list(range(j*GR, j*GR + GR))
        g.wait_vm([("s", n) for n in ns])
        for e in range(4):
            for u, n in enumerate(ns):
                c = "0" if e == 0 else f"v{16+u}"
                g(f"v_dot2_f32_bf16 v{16+u}, v{slot(n)+e}, v{8+e}, {c}")
        for n in ns:
            issue_stream(n + DEPTH)
        for lv in (8, 4, 2, 1):
            for u in range(GR):
                g(f"v_add_f32_dpp v{16+u}, v{16+u}, v{16+u} row_ror:{lv} {DPPM}")
        for u, n in enumerate(ns):
            i, r = n % 16, n // 16
            g(f"v_cndmask_b32_e64 v{12+r}, v{12+r}, v{16+u}, s[{64+2*i}:{65+2*i}]")
    stamp(2)
    for r in range(4):
        bf16r(g, 12+r, 12+r)
        g(f"v_mul_f32 v{12+r}, 0x3db504f3, v{12+r}")
        bf16r(g, 12+r, 12+r)
    g("v_max3_f32 v16, v12, v13, v14")
    g("v_max_f32 v16, v16, v15")
    allreduce_to_sgpr(g, 16, 60, op="max")
    g("v_mov_b32 v16, s60")
    g("s_lshl_b32 s56, s20, 2")
    g("v_mov_b32 v17, s56")
    g(f"ds_write_b32 v17, v16 offset:{L_MAX}")
    g("v_lshlrev_b32 v7, 2, v2")
    g("s_waitcnt lgkmcnt(0)")
    g("s_barrier")
    g(f"ds_read_b32 v16, v7 offset:{L_MAX}")
    g("s_waitcnt lgkmcnt(0)")
    row_allreduce(g, 16, op="max")
    for r in range(4):
        g(f"v_sub_f32 v{12+r}, v{12+r}, v16")
        g(f"v_mul_f32 v{12+r}, 0x3fb8aa3b, v{12+r}")
        g(f"v_exp_f32 v{12+r}, v{12+r}")
    g.nop(1)
    g("v_add_f32 v18, v12, v13")
    g("v_add_f32 v19, v14, v15")
    g("v_add_f32 v18, v18, v19")
    allreduce_to_sgpr(g, 18, 60)
    g("v_mov_b32 v18, s60")
    g(f"ds_write_b32 v17, v18 offset:{L_SUM}")
    g("s_waitcnt lgkmcnt(0)")
    g("s_barrier")
    g(f"ds_read_b32 v18, v7 offset:{L_SUM}")
    g("s_waitcnt lgkmcnt(0)")
    row_allreduce(g, 18)
    g.nop(1)
    g("v_readlane_b32 s60, v18, 0")
    g.nop(2)
    g("v_mov_b32 v18, s60")
    g("v_rcp_f32 v19, v18")
    g.nop(1)
    for r in range(4):
        g(f"v_mul_f32 v24, v{12+r}, v19")
        g(f"v_fma_f32 v25, -v24, v18, v{12+r}")
        g(f"v_fma_f32 v24, v25, v19, v24")
        g(f"v_cvt_pk_bf16_f32 v{16+4+r}, 0, v24")
        g(f"v_cvt_pk_bf16_f32 v{12+r}, v24, 0")
    PLO, PHI = 12, 20
    for e in range(8):
        g(f"v_mov_b32 v{24+e}, 0")
    g.nop(2)
    stamp(3)
    for j in range(64 // GR):
        ns = list(range(64 + j*GR, 64 + j*GR + GR))
        g.wait_vm([("s", n) for n in ns])
        for u, n in enumerate(ns):
            i, r = (n - 64) % 16, (n - 64) // 16
            for e in range(4):
                g(f"v_dot2c_f32_bf16_dpp v{24+2*e}, v{PLO+r}, v{slot(n)+e} row_newbcast:{i} {DPPM}")
                g(f"v_dot2c_f32_bf16_dpp v{25+2*e}, v{PHI+r}, v{slot(n)+e} row_newbcast:{i} {DPPM}")
            issue_stream(n + DEPTH)
    stamp(4)
    g.nop(3)
    xrow_allreduce(g, list(range(24, 32)), list(range(8, 16)))
    g("s_lshl_b32 s56, s20, 9")
    g("v_lshlrev_b32 v7, 5, v2")
    g("v_add_u32 v6, s56, v7")
    g(f"ds_write_b128 v6, v[24:27] offset:{L_OP}")
    g(f"ds_write_b128 v6, v[28:31] offset:{L_OP+16}")
    g("v_lshrrev_b32 v6, 3, v1")
    g("v_and_b32 v7, 7, v1")
    g("s_lshl_b32 s56, s20, 5")
    g("v_lshlrev_b32 v6, 9, v6")
    g("v_lshl_add_u32 v6, v7, 2, v6")
    g("v_add_u32 v6, s56, v6")
    g("s_waitcnt lgkmcnt(0)")
    g("s_barrier")
    g(f"ds_read_b32 v8, v6 offset:{L_OP}")
    g(f"ds_read_b32 v9, v6 offset:{L_OP+4096}")
    g("s_waitcnt lgkmcnt(0)")
    g("v_add_f32 v8, v8, v9")
    g.nop(2)
    g(f"v_add_f32_dpp v8, v8, v8 row_ror:8 {DPPM}")
    xrow_allreduce(g, [8], [9])
    bf16r(g, 8, 8)
    g.nop(1)
    for j in range(8):
        g(f"v_readlane_b32 s{72+j}, v8, {j}")
    g.nop(1)
    for j in range(8):
        g(f"s_lshr_b32 s{64+j}, s{72+j}, 16")
    for e in range(8):
        g(f"v_mov_b32 v{24+e}, 0")
    g.wait_vm("wo")
    for j in range(8):
        for e in range(4):
            g(f"v_dot2c_f32_bf16 v{24+2*e}, s{64+j}, v{32+4*j+e}")
            g(f"v_dot2c_f32_bf16 v{25+2*e}, s{72+j}, v{32+4*j+e}")
    g("s_lshl_b32 s56, s20, 11")
    g("v_lshlrev_b32 v6, 5, v1")
    g("v_add_u32 v6, s56, v6")
    g.nop(2)
    g(f"ds_write_b128 v6, v[24:27] offset:{L_WP}")
    g(f"ds_write_b128 v6, v[28:31] offset:{L_WP+16}")
    g("v_and_b32 v6, 511, v0")
    g("v_lshlrev_b32 v6, 2, v6")
    g("s_waitcnt lgkmcnt(0)")
    g("s_barrier")
    g("s_cmp_ge_u32 s20, 8")
    g("s_cbranch_scc1 L1_skipred")
    for k in range(16):
        g(f"ds_read_b32 v{8+k}, v6 offset:{L_WP + k*2048}")
    g("s_waitcnt lgkmcnt(0)")
    for k in range(8):
        g(f"v_add_f32 v{8+k}, v{8+k}, v{16+k}")
    for k in range(4):
        g(f"v_add_f32 v{8+k}, v{8+k}, v{12+k}")
    g("v_add_f32 v8, v8, v9")
    g("v_add_f32 v10, v10, v11")
    g("v_add_f32 v8, v8, v10")
    g("s_lshl_b32 s56, s2, 11")
    g(f"buffer_store_dword v8, v6, s[44:47], s56 offen sc1")
    g.label("L1_skipred")
    g("s_waitcnt vmcnt(0)")
    g("s_barrier")
    g("s_cmp_lg_u32 s20, 0")
    g("s_cbranch_scc1 L1_wait_flag")
    g("s_lshl_b32 s56, s22, 2")
    g("v_mov_b32 v8, 1")
    g("v_mov_b32 v9, s56")
    g("v_cmp_eq_u32 vcc, 0, v1")
    g("s_and_saveexec_b64 s[62:63], vcc")
    g("buffer_atomic_add v8, v9, s[48:51], 0 offen sc0")
    g("s_waitcnt vmcnt(0)")
    g("s_mov_b64 exec, s[62:63]")
    g("v_readfirstlane_b32 s56, v8")
    g("v_mov_b32 v9, 0")
    g("s_cmp_eq_u32 s56, 31")
    g("s_cselect_b32 s56, 1, 0")
    g("v_mov_b32 v8, s56")
    g(f"ds_write_b32 v9, v8 offset:{L_FLAG}")
    g("s_waitcnt lgkmcnt(0)")
    g.label("L1_wait_flag")
    g("s_barrier")
    stamp(5)
    g("v_mov_b32 v9, 0")
    g(f"ds_read_b32 v8, v9 offset:{L_FLAG}")
    g("s_waitcnt lgkmcnt(0)")
    g("v_readfirstlane_b32 s56, v8")
    g("s_cmp_eq_u32 s56, 0")
    g("s_cbranch_scc1 " + ("L1_ffn" if FUSED else "L1_end"))
    g("v_and_b32 v6, 127, v0")
    g("v_lshrrev_b32 v7, 7, v0")
    g("v_lshlrev_b32 v6, 4, v6")
    g("v_lshl_add_u32 v8, v7, 13, v6")
    g("s_lshl_b32 s56, s22, 16")
    for k in range(4):
        off = f" offset:{k*2048}" if k*2048 < 4096 and k else ""
        if k == 2:
            g("s_add_u32 s56, s56, 4096")
        off = f" offset:{(k&1)*2048}" if (k & 1) else ""
        g(f"buffer_load_dwordx4 {vr(12+4*k,4)}, v8, s[44:47], s56 offen{off} sc1")
    g("buffer_load_dwordx4 v[28:31], v5, s[40:43], 0 offen")
    g("v_lshl_add_u32 v8, v7, 11, v6")
    g("s_waitcnt vmcnt(0)")
    for e in range(4):
        g(f"v_add_f32 v{12+e}, v{12+e}, v{16+e}")
        g(f"v_add_f32 v{20+e}, v{20+e}, v{24+e}")
    for e in range(4):
        g(f"v_add_f32 v{12+e}, v{12+e}, v{20+e}")
    g(f"ds_write_b128 v8, v[12:15] offset:{L_FIN}")
    g("s_waitcnt lgkmcnt(0)")
    g("s_barrier")
    g("s_cmp_lg_u32 s20, 0")
    g("s_cbranch_scc1 " + ("L1_ffn" if FUSED else "L1_end"))
    g("v_lshlrev_b32 v6, 5, v1")
    for k in range(8):
        g(f"ds_read_b128 {vr(32+8*k,4)}, v6 offset:{L_FIN + k*2048}")
        g(f"ds_read_b128 {vr(36+8*k,4)}, v6 offset:{L_FIN + k*2048 + 16}")
    g("s_waitcnt lgkmcnt(0)")
    for k in (0, 2, 4, 6):
        for e in range(8):
            g(f"v_add_f32 v{32+8*k+e}, v{32+8*k+e}, v{40+8*k+e}")
    for k in (0, 4):
        for e in range(8):
            g(f"v_add_f32 v{32+8*k+e}, v{32+8*k+e}, v{48+8*k+e}")
    for e in range(8):
        g(f"v_add_f32 v{32+e}, v{32+e}, v{64+e}")
    X = list(range(16, 24))
    unpack8(g, 28, X)
    for e in range(8):
        bf16r(g, 32+e, 32+e)
        g(f"v_add_f32 v{16+e}, v{16+e}, v{32+e}")
        bf16r(g, 16+e, 16+e)
    g("s_lshl_b32 s56, s22, 11")
    g(f"s_add_u32 s57, s56, {WS_H}")
    SC = " sc1" if FUSED else ""
    g("buffer_store_dwordx4 v[16:19], v6, s[44:47], s57 offen" + SC)
    g("buffer_store_dwordx4 v[20:23], v6, s[44:47], s57 offen offset:16" + SC)
    for e in range(4):
        g(f"v_mov_b32 v{40+e}, 0")
    g(f"s_add_u32 s57, s56, {WS_OACC}")
    g("buffer_store_dwordx4 v[40:43], v6, s[44:47], s57 offen" + SC)
    g("buffer_store_dwordx4 v[40:43], v6, s[44:47], s57 offen offset:16" + SC)
    for e in range(8):
        g(f"v_mov_b32 v{32+e}, v{16+e}")
    layernorm(g, list(range(32, 40)), 8, 24, 60, 61)
    g("s_lshl_b32 s56, s22, 10")
    g(f"s_add_u32 s57, s56, {WS_XN2}")
    g("buffer_store_dwordx4 v[8:11], v5, s[44:47], s57 offen" + SC)
    stamp(6)
    if FUSED:
        g("s_waitcnt vmcnt(0)")
        g("v_mov_b32 v8, 1")
        g("v_mov_b32 v9, 0")
        g("s_mov_b64 s[62:63], exec")
        g("s_mov_b64 exec, 1")
        g("buffer_atomic_add v8, v9, s[48:51], 0 offen offset:32")
        g("s_mov_b64 exec, s[62:63]")
        g.label("L1_ffn")
        g("s_waitcnt vmcnt(0) lgkmcnt(0)")
        g("s_barrier")
        g("s_cmp_lg_u32 s20, 0")
        g("s_cbranch_scc1 L1_tk")
        g("v_mov_b32 v8, 1")
        g("v_mov_b32 v9, 0")
        g("s_mov_b64 s[62:63], exec")
        g("s_mov_b64 exec, 1")
        g("buffer_atomic_add v8, v9, s[48:51], 0 offen offset:40 sc0")
        g("s_waitcnt vmcnt(0)")
        g(f"ds_write_b32 v9, v8 offset:{L_FLAG}")
        g("s_mov_b64 exec, s[62:63]")
        g("s_waitcnt lgkmcnt(0)")
        g.label("L1_tk")
        g("s_barrier")
        g("v_mov_b32 v9, 0")
        g(f"ds_read_b32 v8, v9 offset:{L_FLAG}")
        g("s_waitcnt lgkmcnt(0)")
        g("v_readfirstlane_b32 s2, v8")
        g("s_barrier")
        g("s_branch L2_entry")
    g.label("L1_end")
    g("s_endpgm")

M_X = 0
M_GU = 8192
M_ACT = 24576
M_FLAG = 25088
M_DN = 25600
K2_LDS = 58368
NWG2 = 43

def gen_k2(g, FUSED=False):
    if not FUSED:
        g.raw(".globl ffn_kernel")
        g.raw(".p2align 8")
        g.raw(".type ffn_kernel,@function")
        g.label("ffn_kernel")
    else:
        g.label("L2_entry")
    g(f"s_cmp_ge_u32 s2, {NWG2}")
    g("s_cbranch_scc1 L2_end")
    g("s_load_dwordx4 s[4:7], s[0:1], 48")
    g("s_load_dwordx4 s[8:11], s[0:1], 64")
    g("s_load_dwordx4 s[16:19], s[0:1], 80")
    g("v_lshrrev_b32 v5, 6, v0")
    g("v_and_b32 v1, 63, v0")
    g("v_readfirstlane_b32 s20, v5")
    g("s_lshr_b32 s21, s20, 3")
    g("s_and_b32 s22, s20, 7")
    g("v_and_b32 v2, 7, v1")
    g("v_lshrrev_b32 v3, 3, v1")
    g("s_lshl_b32 s56, s22, 3")
    g("v_add_u32 v4, s56, v3")
    g("s_movk_i32 s57, 22016")
    g("v_mul_lo_u32 v6, v4, s57")
    g("s_lshl_b32 s56, s2, 6")
    g("v_lshl_add_u32 v6, v2, 3, v6")
    g("v_add_u32 v6, s56, v6")
    g("v_and_b32 v7, 15, v1")
    g("v_lshrrev_b32 v8, 4, v1")
    g("s_lshl_b32 s56, s2, 15")
    g("s_lshl_b32 s57, s21, 14")
    g("s_add_u32 s56, s56, s57")
    g("s_lshl_b32 s57, s22, 7")
    g("s_add_u32 s56, s56, s57")
    g("v_lshlrev_b32 v9, 12, v8")
    g("v_lshl_add_u32 v9, v7, 3, v9")
    g("v_add_u32 v9, s56, v9")
    g("v_lshlrev_b32 v10, 4, v0")
    g("s_waitcnt lgkmcnt(0)")
    g("s_cmp_eq_u32 s21, 0")
    g("s_cselect_b32 s24, s4, s6")
    g("s_cselect_b32 s25, s5, s7")
    g("s_and_b32 s25, s25, 0xffff")
    g("s_mov_b32 s26, 1409024")
    g("s_mov_b32 s27, 0x00020000")
    srd(g, 28, 8, 9, 1409024)
    srd(g, 32, 10, 11, 8192)
    srd(g, 44, 18, 19, WS_SIZE)
    srd(g, 48, 16, 17, 256)
    g(f"s_mov_b32 s56, {WS_XN2}")
    srd_off(g, 36, 18, 19, 56, 8192)
    if not FUSED:
        g.issue("buffer_load_dwordx4 v[12:15], v10, s[36:39], 0 offen", "x")
    for j in range(8):
        if j >= 2:
            g(f"s_movk_i32 s57, {j*2752}")
            g.issue(f"buffer_load_dwordx2 {vr(16+2*j,2)}, v6, s[24:27], s57 offen", "w")
        else:
            off = f" offset:{j*2752}" if j else ""
            g.issue(f"buffer_load_dwordx2 {vr(16+2*j,2)}, v6, s[24:27], 0 offen{off}", "w")
    for j in range(4):
        off = f" offset:{j*1024}" if j else ""
        g.issue(f"buffer_load_dwordx2 {vr(32+2*j,2)}, v9, s[28:31], 0 offen{off}", "d")
    if FUSED:
        g("s_cmp_lg_u32 s20, 0")
        g("s_cbranch_scc1 L2_polled")
        g("v_mov_b32 v12, 0")
        g.label("L2_poll")
        g("buffer_load_dword v13, v12, s[48:51], 0 offen offset:32 sc0 sc1")
        g("s_waitcnt vmcnt(0)")
        g("v_readfirstlane_b32 s56, v13")
        g("s_cmp_ge_u32 s56, 8")
        g("s_cbranch_scc1 L2_polled")
        g("s_sleep 2")
        g("s_branch L2_poll")
        g.label("L2_polled")
        g("s_barrier")
        g.issue("buffer_load_dwordx4 v[12:15], v10, s[36:39], 0 offen sc0 sc1", "x")
    g.wait_vm("x")
    g("s_cmp_ge_u32 s20, 8")
    g("s_cbranch_scc1 L2_nox")
    g(f"ds_write_b128 v10, v[12:15] offset:{M_X}")
    g.label("L2_nox")
    g("v_lshlrev_b32 v11, 4, v4")
    g("s_waitcnt lgkmcnt(0)")
    g("s_barrier")
    XP = 40
    for b in range(8):
        g(f"ds_read_b128 {vr(XP+4*b,4)}, v11 offset:{M_X + b*1024}")
    g.wait_vm("w")
    g("s_mov_b32 s60, 0x05040100")
    g("s_mov_b32 s61, 0x07060302")
    WP = 72
    for p in range(4):
        for d in range(2):
            a, b2 = 16 + 2*(2*p) + d, 16 + 2*(2*p+1) + d
            g(f"v_perm_b32 v{WP+4*p+2*d}, v{b2}, v{a}, s60")
            g(f"v_perm_b32 v{WP+4*p+2*d+1}, v{b2}, v{a}, s61")
    g("s_waitcnt lgkmcnt(0)")
    AC = 88
    for p in range(4):
        for b in range(8):
            for c in range(4):
                cc = "0" if p == 0 else f"v{AC+4*b+c}"
                g(f"v_dot2_f32_bf16 v{AC+4*b+c}, v{WP+4*p+c}, v{XP+4*b+p}, {cc}")
    g.nop(3)
    for a in range(32):
        g(f"v_add_f32_dpp v{AC+a}, v{AC+a}, v{AC+a} row_ror:8 {DPPM}")
    g.nop(2)
    for a in range(16):
        g(f"v_permlane16_swap_b32 v{AC+a}, v{AC+a+16}")
    for a in range(16):
        g(f"v_add_f32 v{AC+a}, v{AC+a}, v{AC+a+16}")
    g.nop(2)
    for a in range(8):
        g(f"v_permlane32_swap_b32 v{AC+a}, v{AC+a+8}")
    for a in range(8):
        g(f"v_add_f32 v{AC+a}, v{AC+a}, v{AC+a+8}")
    g("v_bfe_u32 v12, v1, 5, 1")
    g("v_bfe_u32 v13, v1, 4, 1")
    g("v_lshlrev_b32 v12, 8, v12")
    g("v_lshl_add_u32 v12, v13, 9, v12")
    g("v_lshl_add_u32 v12, v2, 4, v12")
    g("s_lshl_b32 s56, s22, 1")
    g("s_add_u32 s56, s56, s21")
    g("s_lshl_b32 s56, s56, 10")
    g("v_add_u32 v12, s56, v12")
    g(f"ds_write_b128 v12, {vr(AC,4)} offset:{M_GU}")
    g(f"ds_write_b128 v12, {vr(AC+4,4)} offset:{M_GU+128}")
    g("v_lshlrev_b32 v12, 2, v0")
    g("s_waitcnt lgkmcnt(0)")
    g("s_barrier")
    g("s_cmp_ge_u32 s20, 4")
    g("s_cbranch_scc1 L2_noact")
    for wk in range(8):
        g(f"ds_read_b32 v{40+wk}, v12 offset:{M_GU + wk*2048}")
        g(f"ds_read_b32 v{48+wk}, v12 offset:{M_GU + wk*2048 + 1024}")
    g("s_waitcnt lgkmcnt(0)")
    for base in (40, 48):
        for k in range(4):
            g(f"v_add_f32 v{base+k}, v{base+k}, v{base+4+k}")
        g(f"v_add_f32 v{base}, v{base}, v{base+1}")
        g(f"v_add_f32 v{base+2}, v{base+2}, v{base+3}")
        g(f"v_add_f32 v{base}, v{base}, v{base+2}")
        bf16r(g, base, base)
    g("v_mul_f32 v41, 0xbfb8aa3b, v40")
    g("v_exp_f32 v41, v41")
    g.nop(1)
    g("v_add_f32 v41, 1.0, v41")
    g("v_rcp_f32 v42, v41")
    g.nop(1)
    g("v_mul_f32 v43, v40, v42")
    g("v_fma_f32 v44, -v43, v41, v40")
    g("v_fma_f32 v43, v44, v42, v43")
    g("v_mul_f32 v45, v40, v42")
    g("v_cmp_u_f32 vcc, v43, v43")
    g.nop(2)
    g("v_cndmask_b32 v43, v43, v45, vcc")
    bf16r(g, 43, 43)
    g("v_mul_f32 v43, v43, v48")
    g("v_cvt_pk_bf16_f32 v43, v43, v43")
    g("v_lshrrev_b32 v12, 1, v12")
    g(f"ds_write_b16 v12, v43 offset:{M_ACT}")
    g("s_waitcnt lgkmcnt(0)")
    g.label("L2_noact")
    g("s_barrier")
    g("s_lshl_b32 s56, s21, 5")
    g("v_lshlrev_b32 v12, 3, v8")
    g("v_add_u32 v12, s56, v12")
    AP = 40
    for b in range(8):
        g(f"ds_read_b64 {vr(AP+2*b,2)}, v12 offset:{M_ACT + b*64}")
    g.wait_vm("d")
    for p in range(2):
        for d in range(2):
            a, b2 = 32 + 2*(2*p) + d, 32 + 2*(2*p+1) + d
            g(f"v_perm_b32 v{WP+4*p+2*d}, v{b2}, v{a}, s60")
            g(f"v_perm_b32 v{WP+4*p+2*d+1}, v{b2}, v{a}, s61")
    g("s_waitcnt lgkmcnt(0)")
    for p in range(2):
        for b in range(8):
            for c in range(4):
                cc = "0" if p == 0 else f"v{AC+4*b+c}"
                g(f"v_dot2_f32_bf16 v{AC+4*b+c}, v{WP+4*p+c}, v{AP+2*b+p}, {cc}")
    g.nop(3)
    for a in range(16):
        g(f"v_permlane16_swap_b32 v{AC+a}, v{AC+a+16}")
    for a in range(16):
        g(f"v_add_f32 v{AC+a}, v{AC+a}, v{AC+a+16}")
    g.nop(2)
    for a in range(8):
        g(f"v_permlane32_swap_b32 v{AC+a}, v{AC+a+8}")
    for a in range(8):
        g(f"v_add_f32 v{AC+a}, v{AC+a}, v{AC+a+8}")
    g("v_bfe_u32 v12, v1, 5, 1")
    g("v_bfe_u32 v13, v1, 4, 1")
    g("v_lshlrev_b32 v12, 12, v12")
    g("v_lshl_add_u32 v12, v13, 13, v12")
    g("v_lshl_add_u32 v12, v7, 4, v12")
    g("s_lshl_b32 s56, s21, 14")
    g("s_lshl_b32 s57, s22, 8")
    g("s_add_u32 s56, s56, s57")
    g("v_add_u32 v12, s56, v12")
    g(f"ds_write_b128 v12, {vr(AC,4)} offset:{M_DN}")
    g(f"ds_write_b128 v12, {vr(AC+4,4)} offset:{M_DN+2048}")
    g("v_lshlrev_b32 v12, 2, v0")
    g("s_waitcnt lgkmcnt(0)")
    g("s_barrier")
    for j in range(4):
        g(f"ds_read_b32 v{40+j}, v12 offset:{M_DN + j*4096}")
        g(f"ds_read_b32 v{44+j}, v12 offset:{M_DN + 16384 + j*4096}")
    g("s_waitcnt lgkmcnt(0)")
    g(f"s_mov_b32 s56, {WS_OACC}")
    for j in range(4):
        g(f"v_add_f32 v{40+j}, v{40+j}, v{44+j}")
        if j:
            g("s_add_u32 s56, s56, 4096")
        g(f"buffer_atomic_add_f32 v{40+j}, v12, s[44:47], s56 offen")
    g("s_waitcnt vmcnt(0)")
    g("s_barrier")
    g("s_cmp_lg_u32 s20, 0")
    g("s_cbranch_scc1 L2_wait_flag")
    g("v_mov_b32 v8, 1")
    g("v_mov_b32 v9, 0")
    g("v_cmp_eq_u32 vcc, 0, v1")
    g("s_and_saveexec_b64 s[62:63], vcc")
    g("buffer_atomic_add v8, v9, s[48:51], 0 offen" + (" offset:36" if FUSED else "") + " sc0")
    g("s_waitcnt vmcnt(0)")
    g("s_mov_b64 exec, s[62:63]")
    g("v_readfirstlane_b32 s56, v8")
    g(f"s_cmp_eq_u32 s56, {NWG2-1}")
    g("s_cselect_b32 s56, 1, 0")
    g("v_mov_b32 v8, s56")
    g(f"ds_write_b32 v9, v8 offset:{M_FLAG}")
    g("s_waitcnt lgkmcnt(0)")
    g.label("L2_wait_flag")
    g("s_barrier")
    g("v_mov_b32 v9, 0")
    g(f"ds_read_b32 v8, v9 offset:{M_FLAG}")
    g("s_waitcnt lgkmcnt(0)")
    g("v_readfirstlane_b32 s56, v8")
    g("s_cmp_eq_u32 s56, 0")
    g("s_cbranch_scc1 L2_end")
    g(f"s_mov_b32 s56, {WS_OACC}")
    g(f"s_mov_b32 s57, {WS_H}")
    g("buffer_load_dwordx4 v[12:15], v10, s[44:47], s56 offen sc0 sc1")
    g("buffer_load_dwordx4 v[16:19], v10, s[44:47], s57 offen" + (" sc0 sc1" if FUSED else ""))
    g("v_lshlrev_b32 v11, 3, v0")
    g("s_waitcnt vmcnt(0)")
    for e in range(4):
        bf16r(g, 12+e, 12+e)
        g(f"v_add_f32 v{12+e}, v{12+e}, v{16+e}")
    g("v_cvt_pk_bf16_f32 v20, v12, v13")
    g("v_cvt_pk_bf16_f32 v21, v14, v15")
    g("buffer_store_dwordx2 v[20:21], v11, s[32:35], 0 offen")
    g.label("L2_end")
    g("s_endpgm")

def kd(name, vgpr, sgpr):
    return f""".amdhsa_kernel {name}
  .amdhsa_next_free_vgpr {vgpr}
  .amdhsa_next_free_sgpr {sgpr}
  .amdhsa_accum_offset {vgpr}
  .amdhsa_group_segment_fixed_size 0
  .amdhsa_kernarg_size 96
  .amdhsa_user_sgpr_count 2
  .amdhsa_user_sgpr_kernarg_segment_ptr 1
  .amdhsa_system_sgpr_workgroup_id_x 1
.end_amdhsa_kernel
"""

HEADER = open("sequential_preLN__mha_block_cached__swiglu_ffn__decode.s.ref").read().split("; Override launch")[0]

def build(NT="", DEPTH=16, INTERLEAVE=False, STAMP=False, KFIRST=0, TOUCH=False, FUSED=False):
    g1 = G(); gen_k1(g1, NT=NT, DEPTH=DEPTH, INTERLEAVE=INTERLEAVE, STAMP=STAMP, KFIRST=KFIRST, TOUCH=TOUCH, FUSED=FUSED)
    g2 = G(); gen_k2(g2, FUSED=FUSED)
    out = HEADER
    if FUSED:
        out += f"; @launch kernel=attn_kernel grid=(256,1,1) block=(1024,1,1) lds={max(K1_LDS, K2_LDS)}\n"
        out += '.amdgcn_target "amdgcn-amd-amdhsa--gfx950"\n.text\n'
        out += "\n".join(g1.lines) + "\n" + "\n".join(g2.lines) + "\n"
        out += '.section .rodata,"a"\n.p2align 6\n'
        out += kd("attn_kernel", 128, 102)
        return out
    out += f"; @launch kernel=attn_kernel grid=(256,1,1) block=(1024,1,1) lds={K1_LDS}\n"
    out += f"; @launch kernel=ffn_kernel grid=({NWG2},1,1) block=(1024,1,1) lds={K2_LDS}\n"
    out += '.amdgcn_target "amdgcn-amd-amdhsa--gfx950"\n.text\n'
    out += "\n".join(g1.lines) + "\n" + "\n".join(g2.lines) + "\n"
    out += '.section .rodata,"a"\n.p2align 6\n'
    out += kd("attn_kernel", 128, 102)
    out += ".p2align 6\n"
    out += kd("ffn_kernel", 128, 100)
    return out

if __name__ == "__main__":
    import argparse
    ap = argparse.ArgumentParser()
    ap.add_argument("-o", default="sequential_preLN__mha_block_cached__swiglu_ffn__decode.s")
    ap.add_argument("--nt", default="nt")
    ap.add_argument("--stamp", action="store_true")
    ap.add_argument("--kfirst", type=int, default=0)
    ap.add_argument("--touch", action="store_true")
    ap.add_argument("--fused", action="store_true")
    ap.add_argument("--il", action="store_true")
    ap.add_argument("--depth", type=int, default=16)
    a = ap.parse_args()
    open(a.o, "w").write(build(NT=a.nt, DEPTH=a.depth, INTERLEAVE=a.il, STAMP=a.stamp, KFIRST=a.kfirst, TOUCH=a.touch, FUSED=a.fused))
    print("wrote", a.o)
```

```python
import sys
from gen import G, DPPM, vr, sr, allreduce_to_sgpr, row_allreduce, bf16r, xrow_allreduce, layernorm, unpack8, srd, srd_off, kd, HEADER

KNAME = "sequential_preLN__mha_block_cached__swiglu_ffn__decode_kernel"
WS_AACC = 0x0
WS_OACC = 0x4000
WS_STAMP = 0x90000
WS_SIZE = 0x200000
D_ZFLAG = 128
D_ADONE = 0
D_TICKET = 64
D_FDONE = 192

L_XN = 0
L_QP = 1024
L_MAX = 9216
L_SUM = 9280
L_FLAG = 9344
L_OP = 10240
L_WP = 18432
M_X = 0
M_GU = 8192
M_ACT = 16384
M_FLAG = 16896
M_DN = 17408
M_H = 33792
M_GW = 50176
M_UW = 82944
M_DW = 115712
LDS_TOTAL = 148480
NROLE = 43

def gen(g, STAMP=False, DEPTH=16, SLEEP=8):
    nt = " nt"
    def stamp(idx):
        if not STAMP: return
        g("s_memrealtime s[96:97]")
        g("s_waitcnt lgkmcnt(0)")
        g("v_mov_b32 v126, s96")
        g("v_mov_b32 v127, s97")
        g("s_lshl_b32 s98, s2, 7")
        g(f"s_add_u32 s98, s98, {WS_STAMP + idx*8}")
        g("s_lshl_b32 s99, s20, 15")
        g("s_add_u32 s98, s98, s99")
        g("v_mov_b32 v125, 0")
        g("buffer_store_dwordx2 v[126:127], v125, s[44:47], s98 offen")
        g.vm.append("stamp")
    g.raw(f".globl {KNAME}")
    g.raw(".p2align 8")
    g.raw(f".type {KNAME},@function")
    g.label(KNAME)
    g("s_cmp_ge_u32 s2, 256")
    g("s_cbranch_scc1 L_end")
    g("s_load_dwordx4 s[4:7], s[0:1], 0")
    g("s_load_dwordx4 s[8:11], s[0:1], 16")
    g("s_load_dwordx2 s[12:13], s[0:1], 32")
    g("s_load_dwordx4 s[16:19], s[0:1], 80")
    g("v_lshrrev_b32 v5, 6, v0")
    g("v_and_b32 v1, 63, v0")
    g("v_and_b32 v2, 15, v0")
    g("v_bfe_u32 v3, v0, 4, 2")
    g("v_readfirstlane_b32 s20, v5")
    g("s_and_b32 s21, s2, 31")
    g("s_lshr_b32 s22, s2, 5")
    g("s_mov_b32 s64, 0x00010001")
    g("s_mov_b32 s65, 0x00010001")
    for i in range(1, 16):
        g(f"s_lshl_b64 s[{64+2*i}:{65+2*i}], s[64:65], {i}")
    g("v_lshlrev_b32 v5, 4, v1")
    g("s_lshl_b32 s56, s20, 16")
    g("v_add_u32 v4, s56, v5")
    g("s_lshl_b32 s56, s20, 18")
    g("v_lshlrev_b32 v6, 13, v3")
    g("v_lshlrev_b32 v7, 4, v2")
    g("v_add3_u32 v6, v6, v7, s56")
    g("s_waitcnt lgkmcnt(0)")
    g("s_lshl_b32 s56, s22, 10")
    srd_off(g, 40, 4, 5, 56, 1024)
    g("s_lshl_b32 s56, s21, 8")
    g("s_sub_u32 s57, 0x400000, s56")
    g("s_add_u32 s32, s10, s56")
    g("s_addc_u32 s33, s11, 0")
    g("s_and_b32 s33, s33, 0xffff")
    g("s_mov_b32 s34, s57")
    g("s_mov_b32 s35, 0x00020000")
    g("s_lshl_b32 s56, s2, 20")
    srd_off(g, 24, 6, 7, 56, 0x100000)
    srd_off(g, 28, 8, 9, 56, 0x100000)
    g("s_lshl_b32 s56, s21, 17")
    srd_off(g, 36, 12, 13, 56, 0x20000)
    srd(g, 44, 18, 19, WS_SIZE)
    srd(g, 48, 16, 17, 256)
    g.issue("buffer_load_dwordx4 v[24:27], v5, s[40:43], 0 offen", "x")
    for i in range(8):
        g(f"s_mov_b32 s57, {i*32768}")
        g.issue(f"buffer_load_dwordx4 {vr(32+4*i,4)}, v6, s[32:35], s57 offen", "wq")
    for e in range(4):
        g(f"v_mov_b32 v{8+e}, 0")
    g("v_lshlrev_b32 v7, 5, v0")
    g("s_cmp_eq_u32 s2, 0")
    g(f"s_cselect_b32 s57, 0, {WS_SIZE}")
    g.issue("buffer_store_dwordx4 v[8:11], v7, s[44:47], s57 offen sc1", "z")
    g.issue("buffer_store_dwordx4 v[8:11], v7, s[44:47], s57 offen offset:16 sc1", "z")
    RING = 64
    def slot(n):
        return RING + 4 * (n % DEPTH)
    cur_soff = [None]
    def issue_stream(n):
        if n < 128:
            srdn = 24 if n < 64 else 28
            i = n % 64
            so, imm = (i >> 2) * 4096, (i & 3) * 1024
            if so == 0:
                sop = "0"
            else:
                if cur_soff[0] != so:
                    g(f"s_mov_b32 s58, {so}")
                    cur_soff[0] = so
                sop = "s58"
            off = f" offset:{imm}" if imm else ""
            g.issue(f"buffer_load_dwordx4 {vr(slot(n),4)}, v4, {sr(srdn,4)}, {sop} offen{off}{nt}", ("s", n))
        elif n < 136:
            j = n - 128
            if j == 0:
                g("s_lshl_b32 s59, s20, 13")
            if j == 4:
                g("s_add_u32 s59, s59, 4096")
            off = f" offset:{(j&3)*1024}" if (j & 3) else ""
            g.issue(f"buffer_load_dwordx4 {vr(32+4*j,4)}, v5, s[36:39], s59 offen{off}", "wo")
    for n in range(DEPTH):
        issue_stream(n)
    g.wait_vm("x")
    X = list(range(16, 24))
    unpack8(g, 24, X)
    layernorm(g, X, 8, 24, 60, 61)
    g(f"ds_write_b128 v5, v[8:11] offset:{L_XN}")
    g("s_lshl_b32 s56, s20, 6")
    g("v_lshlrev_b32 v7, 1, v3")
    g("v_add_u32 v7, s56, v7")
    g("s_waitcnt lgkmcnt(0)")
    for i in range(8):
        g(f"ds_read_u16 v{16+i}, v7 offset:{L_XN + i*8}")
    for e in range(8):
        g(f"v_mov_b32 v{24+e}, 0")
    g("s_waitcnt lgkmcnt(0)")
    for i in range(8):
        g(f"v_lshlrev_b32 v{8+i}, 16, v{16+i}")
    g.wait_vm("wq")
    for i in range(8):
        for e in range(4):
            g(f"v_dot2c_f32_bf16 v{24+2*e}, v{16+i}, v{32+4*i+e}")
            g(f"v_dot2c_f32_bf16 v{25+2*e}, v{8+i}, v{32+4*i+e}")
    g.nop(3)
    xrow_allreduce(g, list(range(24, 32)), list(range(16, 24)))
    g("s_lshl_b32 s56, s20, 9")
    g("v_lshlrev_b32 v7, 5, v2")
    g("v_add_u32 v6, s56, v7")
    g(f"ds_write_b128 v6, v[24:27] offset:{L_QP}")
    g(f"ds_write_b128 v6, v[28:31] offset:{L_QP+16}")
    g("v_lshl_add_u32 v6, v3, 11, v7")
    g("s_waitcnt lgkmcnt(0)")
    g("s_barrier")
    for k in range(4):
        g(f"ds_read_b128 {vr(32+8*k,4)}, v6 offset:{L_QP + k*512}")
        g(f"ds_read_b128 {vr(36+8*k,4)}, v6 offset:{L_QP + k*512 + 16}")
    g("s_waitcnt lgkmcnt(0)")
    for e in range(8):
        g(f"v_add_f32 v{32+e}, v{32+e}, v{40+e}")
        g(f"v_add_f32 v{48+e}, v{48+e}, v{56+e}")
    for e in range(8):
        g(f"v_add_f32 v{32+e}, v{32+e}, v{48+e}")
    xrow_allreduce(g, list(range(32, 40)), list(range(40, 48)))
    for e in range(4):
        g(f"v_cvt_pk_bf16_f32 v{8+e}, v{32+2*e}, v{33+2*e}")
    for r in range(4):
        g(f"v_mov_b32 v{12+r}, 0")
    GR = 4
    for j in range(64 // GR):
        ns = list(range(j*GR, j*GR + GR))
        g.wait_vm([("s", n) for n in ns])
        for e in range(4):
            for u, n in enumerate(ns):
                c = "0" if e == 0 else f"v{16+u}"
                g(f"v_dot2_f32_bf16 v{16+u}, v{slot(n)+e}, v{8+e}, {c}")
        for n in ns:
            issue_stream(n + DEPTH)
        for lv in (8, 4, 2, 1):
            for u in range(GR):
                g(f"v_add_f32_dpp v{16+u}, v{16+u}, v{16+u} row_ror:{lv} {DPPM}")
        for u, n in enumerate(ns):
            i, r = n % 16, n // 16
            g(f"v_cndmask_b32_e64 v{12+r}, v{12+r}, v{16+u}, s[{64+2*i}:{65+2*i}]")
    for r in range(4):
        bf16r(g, 12+r, 12+r)
        g(f"v_mul_f32 v{12+r}, 0x3db504f3, v{12+r}")
        bf16r(g, 12+r, 12+r)
    g("v_max3_f32 v16, v12, v13, v14")
    g("v_max_f32 v16, v16, v15")
    allreduce_to_sgpr(g, 16, 60, op="max")
    g("v_mov_b32 v16, s60")
    g("s_lshl_b32 s56, s20, 2")
    g("v_mov_b32 v17, s56")
    g(f"ds_write_b32 v17, v16 offset:{L_MAX}")
    g("v_lshlrev_b32 v7, 2, v2")
    g("s_waitcnt lgkmcnt(0)")
    g("s_barrier")
    g("s_or_b32 s56, s2, s20")
    g("s_cmp_lg_u32 s56, 0")
    g("s_cbranch_scc1 L_nozf")
    g("v_mov_b32 v18, 1")
    g("v_mov_b32 v19, 0")
    g("s_mov_b64 s[62:63], exec")
    g("s_mov_b64 exec, 1")
    g(f"buffer_atomic_add v18, v19, s[48:51], 0 offen offset:{D_ZFLAG}")
    g("s_mov_b64 exec, s[62:63]")
    g.label("L_nozf")
    g.vm.append("zf")
    g(f"ds_read_b32 v16, v7 offset:{L_MAX}")
    g("s_waitcnt lgkmcnt(0)")
    row_allreduce(g, 16, op="max")
    for r in range(4):
        g(f"v_sub_f32 v{12+r}, v{12+r}, v16")
        g(f"v_mul_f32 v{12+r}, 0x3fb8aa3b, v{12+r}")
        g(f"v_exp_f32 v{12+r}, v{12+r}")
    g.nop(1)
    g("v_add_f32 v18, v12, v13")
    g("v_add_f32 v19, v14, v15")
    g("v_add_f32 v18, v18, v19")
    allreduce_to_sgpr(g, 18, 60)
    g("v_mov_b32 v18, s60")
    g(f"ds_write_b32 v17, v18 offset:{L_SUM}")
    g("s_waitcnt lgkmcnt(0)")
    g("s_barrier")
    g(f"ds_read_b32 v18, v7 offset:{L_SUM}")
    g("s_waitcnt lgkmcnt(0)")
    row_allreduce(g, 18)
    g.nop(1)
    g("v_readlane_b32 s60, v18, 0")
    g.nop(2)
    g("v_mov_b32 v18, s60")
    g("v_rcp_f32 v19, v18")
    g.nop(1)
    for r in range(4):
        g(f"v_mul_f32 v24, v{12+r}, v19")
        g(f"v_fma_f32 v25, -v24, v18, v{12+r}")
        g(f"v_fma_f32 v24, v25, v19, v24")
        g(f"v_cvt_pk_bf16_f32 v{20+r}, 0, v24")
        g(f"v_cvt_pk_bf16_f32 v{12+r}, v24, 0")
    PLO, PHI = 12, 20
    for e in range(8):
        g(f"v_mov_b32 v{24+e}, 0")
    g.nop(2)
    g.vm = [t for t in g.vm if t != "zf"]
    for j in range(64 // GR):
        ns = list(range(64 + j*GR, 64 + j*GR + GR))
        g.wait_vm([("s", n) for n in ns])
        for u, n in enumerate(ns):
            i, r = (n - 64) % 16, (n - 64) // 16
            for e in range(4):
                g(f"v_dot2c_f32_bf16_dpp v{24+2*e}, v{PLO+r}, v{slot(n)+e} row_newbcast:{i} {DPPM}")
                g(f"v_dot2c_f32_bf16_dpp v{25+2*e}, v{PHI+r}, v{slot(n)+e} row_newbcast:{i} {DPPM}")
            issue_stream(n + DEPTH)
    stamp(0)
    g.nop(3)
    xrow_allreduce(g, list(range(24, 32)), list(range(8, 16)))
    g("s_lshl_b32 s56, s20, 9")
    g("v_lshlrev_b32 v7, 5, v2")
    g("v_add_u32 v6, s56, v7")
    g(f"ds_write_b128 v6, v[24:27] offset:{L_OP}")
    g(f"ds_write_b128 v6, v[28:31] offset:{L_OP+16}")
    g("v_mov_b32 v10, 0")
    g.issue(f"buffer_load_dword v11, v10, s[48:51], 0 offen offset:{D_ZFLAG} sc1", "zfl")
    g("v_lshrrev_b32 v6, 3, v1")
    g("v_and_b32 v7, 7, v1")
    g("s_lshl_b32 s56, s20, 5")
    g("v_lshlrev_b32 v6, 9, v6")
    g("v_lshl_add_u32 v6, v7, 2, v6")
    g("v_add_u32 v6, s56, v6")
    g("s_waitcnt lgkmcnt(0)")
    g("s_barrier")
    g(f"ds_read_b32 v8, v6 offset:{L_OP}")
    g(f"ds_read_b32 v9, v6 offset:{L_OP+4096}")
    g("s_waitcnt lgkmcnt(0)")
    g("v_add_f32 v8, v8, v9")
    g.nop(2)
    g(f"v_add_f32_dpp v8, v8, v8 row_ror:8 {DPPM}")
    xrow_allreduce(g, [8], [9])
    bf16r(g, 8, 8)
    g.nop(1)
    for j in range(8):
        g(f"v_readlane_b32 s{72+j}, v8, {j}")
    g.nop(1)
    for j in range(8):
        g(f"s_lshr_b32 s{64+j}, s{72+j}, 16")
    for e in range(8):
        g(f"v_mov_b32 v{24+e}, 0")
    g.wait_all_vm()
    for j in range(8):
        for e in range(4):
            g(f"v_dot2c_f32_bf16 v{24+2*e}, s{64+j}, v{32+4*j+e}")
            g(f"v_dot2c_f32_bf16 v{25+2*e}, s{72+j}, v{32+4*j+e}")
    g("s_lshl_b32 s56, s20, 11")
    g("v_lshlrev_b32 v6, 5, v1")
    g("v_add_u32 v6, s56, v6")
    g.nop(2)
    g(f"ds_write_b128 v6, v[24:27] offset:{L_WP}")
    g(f"ds_write_b128 v6, v[28:31] offset:{L_WP+16}")
    g("v_and_b32 v6, 511, v0")
    g("v_lshlrev_b32 v6, 2, v6")
    g.label("L_zpoll")
    g("v_readfirstlane_b32 s56, v11")
    g("s_cmp_lg_u32 s56, 0")
    g("s_cbranch_scc1 L_zok")
    g("s_sleep 2")
    g(f"buffer_load_dword v11, v10, s[48:51], 0 offen offset:{D_ZFLAG} sc1")
    g("s_waitcnt vmcnt(0)")
    g("s_branch L_zpoll")
    g.label("L_zok")
    g("s_waitcnt lgkmcnt(0)")
    g("s_barrier")
    g("s_cmp_ge_u32 s20, 8")
    g("s_cbranch_scc1 L_skipred")
    for k in range(16):
        g(f"ds_read_b32 v{8+k}, v6 offset:{L_WP + k*2048}")
    g("s_waitcnt lgkmcnt(0)")
    for k in range(8):
        g(f"v_add_f32 v{8+k}, v{8+k}, v{16+k}")
    for k in range(4):
        g(f"v_add_f32 v{8+k}, v{8+k}, v{12+k}")
    g("v_add_f32 v8, v8, v9")
    g("v_add_f32 v10, v10, v11")
    g("v_add_f32 v8, v8, v10")
    g("s_lshl_b32 s56, s22, 11")
    g(f"s_add_u32 s56, s56, {WS_AACC}")
    g("buffer_atomic_add_f32 v8, v6, s[44:47], s56 offen")
    g.label("L_skipred")
    g("s_waitcnt vmcnt(0)")
    g("s_barrier")
    stamp(1)
    g("s_cmp_lg_u32 s20, 0")
    g("s_cbranch_scc1 L_tk")
    g("v_mov_b32 v8, 1")
    g("v_mov_b32 v10, 1")
    g("v_mov_b32 v9, 0")
    g("s_mov_b64 s[62:63], exec")
    g("s_mov_b64 exec, 1")
    g(f"buffer_atomic_add v10, v9, s[48:51], 0 offen offset:{D_ADONE}")
    g(f"buffer_atomic_add v8, v9, s[48:51], 0 offen offset:{D_TICKET} sc0")
    g("s_waitcnt vmcnt(0)")
    g(f"ds_write_b32 v9, v8 offset:{L_FLAG}")
    g("s_mov_b64 exec, s[62:63]")
    g("s_waitcnt lgkmcnt(0)")
    g.label("L_tk")
    g("s_barrier")
    g("v_mov_b32 v9, 0")
    g(f"ds_read_b32 v8, v9 offset:{L_FLAG}")
    g("s_waitcnt lgkmcnt(0)")
    g("v_readfirstlane_b32 s3, v8")
    g(f"s_cmp_ge_u32 s3, {NROLE}")
    g("s_cbranch_scc1 L_end")
    g("s_barrier")
    g.vm = []
    g("s_load_dwordx4 s[8:11], s[0:1], 48")
    g("s_load_dwordx4 s[12:15], s[0:1], 64")
    g("v_lshlrev_b32 v10, 4, v0")
    g("v_lshrrev_b32 v6, 2, v0")
    g("s_movk_i32 s57, 2752")
    g("v_mul_lo_u32 v6, v6, s57")
    g("v_and_b32 v7, 3, v0")
    g("s_lshl_b32 s56, s3, 6")
    g("v_lshl_add_u32 v6, v7, 4, v6")
    g("v_add_u32 v6, s56, v6")
    g(f"v_add_u32 v7, {M_GW}, v10")
    g(f"v_add_u32 v8, {M_UW}, v10")
    g(f"v_add_u32 v9, {M_DW}, v10")
    g("s_waitcnt lgkmcnt(0)")
    srd(g, 24, 8, 9, 1409024)
    srd(g, 52, 10, 11, 1409024)
    srd(g, 28, 12, 13, 1409024)
    srd(g, 32, 14, 15, 8192)
    srd(g, 36, 4, 5, 8192)
    g("s_mov_b32 s57, 704512")
    g("s_lshl_b32 s58, s3, 15")
    g("s_add_u32 s59, s58, 16384")
    g("buffer_load_dwordx4 v[16:19], v6, s[24:27], 0 offen")
    g("buffer_load_dwordx4 v[20:23], v6, s[24:27], s57 offen")
    g("buffer_load_dwordx4 v[24:27], v6, s[52:55], 0 offen")
    g("buffer_load_dwordx4 v[28:31], v6, s[52:55], s57 offen")
    g("buffer_load_dwordx4 v[32:35], v10, s[28:31], s58 offen")
    g("buffer_load_dwordx4 v[36:39], v10, s[28:31], s59 offen")
    g("buffer_load_dwordx4 v[12:15], v10, s[36:39], 0 offen")
    g("s_lshr_b32 s21, s20, 3")
    g("s_bfe_u32 s22, s20, 0x10002")
    g("s_and_b32 s23, s20, 3")
    g("v_lshrrev_b32 v2, 4, v1")
    g("v_bfe_u32 v3, v1, 2, 2")
    g("v_and_b32 v4, 3, v1")
    g("v_and_b32 v11, 7, v1")
    g("v_lshlrev_b32 v40, 10, v11")
    g("v_lshl_add_u32 v40, v2, 4, v40")
    g("s_lshl_b32 s56, s23, 8")
    g("v_add_u32 v40, s56, v40")
    g("v_lshl_add_u32 v41, v2, 3, v3")
    g("v_lshlrev_b32 v42, 6, v41")
    g("v_lshl_add_u32 v42, v4, 3, v42")
    g("s_lshl_b32 s56, s23, 13")
    g("s_lshl_b32 s57, s22, 5")
    g("s_add_u32 s56, s56, s57")
    g(f"s_mul_i32 s57, s21, {M_UW - M_GW}")
    g("s_add_u32 s56, s56, s57")
    g(f"s_add_u32 s56, s56, {M_GW}")
    g("v_add_u32 v42, s56, v42")
    g("v_lshlrev_b32 v43, 10, v41")
    g("v_lshl_add_u32 v43, v4, 3, v43")
    g("s_lshl_b32 s56, s20, 6")
    g(f"s_add_u32 s56, s56, {M_DW}")
    g("v_add_u32 v43, s56, v43")
    g("v_lshlrev_b32 v44, 6, v11")
    g("v_lshl_add_u32 v44, v2, 4, v44")
    g("v_and_b32 v45, 15, v1")
    g("v_lshlrev_b32 v46, 9, v2")
    g("v_lshl_add_u32 v46, v45, 2, v46")
    g("s_lshl_b32 s56, s23, 1")
    g("s_add_u32 s56, s56, s21")
    g("s_lshl_b32 s56, s56, 10")
    g("s_lshl_b32 s57, s22, 6")
    g("s_add_u32 s56, s56, s57")
    g("v_add_u32 v46, s56, v46")
    g("v_lshlrev_b32 v47, 13, v2")
    g("v_lshl_add_u32 v47, v45, 2, v47")
    g("s_lshl_b32 s56, s20, 7")
    g("v_add_u32 v47, s56, v47")
    g("s_waitcnt vmcnt(1)")
    g("ds_write_b128 v7, v[16:19]")
    g("ds_write_b128 v7, v[20:23] offset:16384")
    g("ds_write_b128 v8, v[24:27]")
    g("ds_write_b128 v8, v[28:31] offset:16384")
    g("ds_write_b128 v9, v[32:35]")
    g("ds_write_b128 v9, v[36:39] offset:16384")
    g("s_cmp_lg_u32 s20, 0")
    g("s_cbranch_scc1 L_polled")
    g("v_mov_b32 v16, 0")
    g.label("L_poll")
    g(f"buffer_load_dword v17, v16, s[48:51], 0 offen offset:{D_ADONE} sc1")
    g("s_waitcnt vmcnt(0)")
    g("v_readfirstlane_b32 s56, v17")
    g("s_cmp_ge_u32 s56, 256")
    g("s_cbranch_scc1 L_polled")
    g(f"s_sleep {SLEEP}")
    g("s_branch L_poll")
    g.label("L_polled")
    g("s_barrier")
    stamp(2)
    g("s_cmp_ge_u32 s20, 8")
    g("s_cbranch_scc1 L_noln")
    g("v_lshlrev_b32 v11, 5, v0")
    g(f"buffer_load_dwordx4 v[16:19], v11, s[44:47], 0 offen offset:{WS_AACC} sc1")
    g(f"buffer_load_dwordx4 v[20:23], v11, s[44:47], 0 offen offset:{WS_AACC+16} sc1")
    g("s_waitcnt vmcnt(0)")
    X = list(range(24, 32))
    unpack8(g, 12, X)
    for e in range(8):
        bf16r(g, 16+e, 16+e)
        g(f"v_add_f32 v{24+e}, v{24+e}, v{16+e}")
        bf16r(g, 24+e, 24+e)
    g(f"ds_write_b128 v11, v[24:27] offset:{M_H}")
    g(f"ds_write_b128 v11, v[28:31] offset:{M_H+16}")
    layernorm(g, X, 12, 32, 60, 61)
    g(f"ds_write_b128 v10, v[12:15] offset:{M_X}")
    g.label("L_noln")
    g("s_waitcnt vmcnt(0) lgkmcnt(0)")
    g("s_barrier")
    stamp(3)
    for st in range(4):
        g(f"ds_read_b128 {vr(48+4*st,4)}, v40 offset:{M_X + st*64}")
        g(f"ds_read_b64_tr_b16 {vr(64+4*st,2)}, v42 offset:{st*2048}")
        g(f"ds_read_b64_tr_b16 {vr(66+4*st,2)}, v42 offset:{st*2048+256}")
    for st in range(4):
        g(f"s_waitcnt lgkmcnt({9-3*st})")
        c = "0" if st == 0 else "v[80:83]"
        g(f"v_mfma_f32_16x16x32_bf16 v[80:83], {vr(48+4*st,4)}, {vr(64+4*st,4)}, {c}")
    g("s_nop 7")
    g("s_nop 3")
    g("s_mov_b32 exec_hi, 0")
    for r in range(4):
        g(f"ds_write_b32 v46, v{80+r} offset:{M_GU + r*128}")
    g("s_mov_b32 exec_hi, -1")
    g("v_lshlrev_b32 v12, 2, v0")
    g("s_waitcnt lgkmcnt(0)")
    g("s_barrier")
    stamp(4)
    g("s_cmp_ge_u32 s20, 4")
    g("s_cbranch_scc1 L_noact")
    for kq in range(4):
        g(f"ds_read_b32 v{16+kq}, v12 offset:{M_GU + kq*2048}")
        g(f"ds_read_b32 v{20+kq}, v12 offset:{M_GU + kq*2048 + 1024}")
    g("s_waitcnt lgkmcnt(0)")
    for base in (16, 20):
        g(f"v_add_f32 v{base}, v{base}, v{base+1}")
        g(f"v_add_f32 v{base+2}, v{base+2}, v{base+3}")
        g(f"v_add_f32 v{base}, v{base}, v{base+2}")
        bf16r(g, base, base)
    g("v_mul_f32 v17, 0xbfb8aa3b, v16")
    g("v_exp_f32 v17, v17")
    g.nop(1)
    g("v_add_f32 v17, 1.0, v17")
    g("v_rcp_f32 v18, v17")
    g.nop(1)
    g("v_mul_f32 v19, v16, v18")
    g("v_fma_f32 v21, -v19, v17, v16")
    g("v_fma_f32 v19, v21, v18, v19")
    g("v_mul_f32 v22, v16, v18")
    g("v_cmp_u_f32 vcc, v19, v19")
    g.nop(2)
    g("v_cndmask_b32 v19, v19, v22, vcc")
    bf16r(g, 19, 19)
    g("v_mul_f32 v19, v19, v20")
    g("v_cvt_pk_bf16_f32 v19, v19, v19")
    g("v_lshrrev_b32 v13, 1, v12")
    g(f"ds_write_b16 v13, v19 offset:{M_ACT}")
    g("s_waitcnt lgkmcnt(0)")
    g.label("L_noact")
    g("s_barrier")
    g(f"ds_read_b128 v[48:51], v44 offset:{M_ACT}")
    for i in range(2):
        g(f"ds_read_b64_tr_b16 {vr(64+4*i,2)}, v43 offset:{i*32}")
        g(f"ds_read_b64_tr_b16 {vr(66+4*i,2)}, v43 offset:{i*32+4096}")
    g("s_waitcnt lgkmcnt(0)")
    for i in range(2):
        g(f"v_mfma_f32_16x16x32_bf16 {vr(80+4*i,4)}, v[48:51], {vr(64+4*i,4)}, 0")
    g("s_nop 7")
    g("s_nop 3")
    g("s_mov_b32 exec_hi, 0")
    for i in range(2):
        for r in range(4):
            g(f"ds_write_b32 v47, v{80+4*i+r} offset:{M_DN + r*2048 + i*64}")
    g("s_mov_b32 exec_hi, -1")
    g("s_waitcnt lgkmcnt(0)")
    g("s_barrier")
    stamp(5)
    for j in range(4):
        g(f"ds_read_b32 v{16+j}, v12 offset:{M_DN + j*4096}")
    g(f"s_mov_b32 s56, {WS_OACC}")
    for j in range(4):
        g(f"s_waitcnt lgkmcnt({3-j})")
        if j:
            g("s_add_u32 s56, s56, 4096")
        g(f"buffer_atomic_add_f32 v{16+j}, v12, s[44:47], s56 offen")
    g("s_waitcnt vmcnt(0)")
    g("s_barrier")
    stamp(6)
    g("s_cmp_lg_u32 s20, 0")
    g("s_cbranch_scc1 L_wait_flag")
    g("v_mov_b32 v8, 1")
    g("v_mov_b32 v9, 0")
    g("s_mov_b64 s[62:63], exec")
    g("s_mov_b64 exec, 1")
    g(f"buffer_atomic_add v8, v9, s[48:51], 0 offen offset:{D_FDONE} sc0")
    g("s_waitcnt vmcnt(0)")
    g(f"ds_write_b32 v9, v8 offset:{M_FLAG}")
    g("s_mov_b64 exec, s[62:63]")
    g("s_waitcnt lgkmcnt(0)")
    g.label("L_wait_flag")
    g("s_barrier")
    g("v_mov_b32 v9, 0")
    g(f"ds_read_b32 v8, v9 offset:{M_FLAG}")
    g("s_waitcnt lgkmcnt(0)")
    g("v_readfirstlane_b32 s56, v8")
    g(f"s_cmp_lg_u32 s56, {NROLE-1}")
    g("s_cbranch_scc1 L_end")
    g(f"s_mov_b32 s56, {WS_OACC}")
    g("buffer_load_dwordx4 v[12:15], v10, s[44:47], s56 offen sc1")
    g(f"ds_read_b128 v[16:19], v10 offset:{M_H}")
    g("v_lshlrev_b32 v11, 3, v0")
    g("s_waitcnt vmcnt(0) lgkmcnt(0)")
    for e in range(4):
        bf16r(g, 12+e, 12+e)
        g(f"v_add_f32 v{12+e}, v{12+e}, v{16+e}")
    g("v_cvt_pk_bf16_f32 v20, v12, v13")
    g("v_cvt_pk_bf16_f32 v21, v14, v15")
    g("buffer_store_dwordx2 v[20:21], v11, s[32:35], 0 offen")
    stamp(7)
    g.label("L_end")
    g("s_endpgm")

def build(**kw):
    g = G(); gen(g, **kw)
    out = HEADER
    out += f"; @launch kernel={KNAME} grid=(256,1,1) block=(1024,1,1) lds={LDS_TOTAL}\n"
    out += '.amdgcn_target "amdgcn-amd-amdhsa--gfx950"\n.text\n'
    out += "\n".join(g.lines) + "\n"
    out += '.section .rodata,"a"\n.p2align 6\n'
    out += kd(KNAME, 128, 102)
    return out

if __name__ == "__main__":
    import argparse
    ap = argparse.ArgumentParser()
    ap.add_argument("-o", default="sequential_preLN__mha_block_cached__swiglu_ffn__decode.s")
    ap.add_argument("--stamp", action="store_true")
    ap.add_argument("--depth", type=int, default=16)
    ap.add_argument("--sleep", type=int, default=8)
    a = ap.parse_args()
    open(a.o, "w").write(build(STAMP=a.stamp, DEPTH=a.depth, SLEEP=a.sleep))
    print("wrote", a.o)
```

```python
import sys
from gen import G, vr, sr, srd_off, kd, HEADER
def gen(name, waves, depth, a, b, mul=1, c=0):
    g = G()
    g.raw(f".globl {name}"); g.raw(".p2align 8"); g.raw(f".type {name},@function"); g.label(name)
    g("s_cmp_ge_u32 s2, 256"); g(f"s_cbranch_scc1 L_{name}_end")
    g("s_load_dwordx4 s[4:7], s[0:1], 0"); g("s_load_dwordx4 s[8:11], s[0:1], 16")
    g("v_lshrrev_b32 v5, 6, v0"); g("v_and_b32 v1, 63, v0"); g("v_readfirstlane_b32 s20, v5")
    g("v_lshlrev_b32 v5, 4, v1")
    per_wave = (1 << 20) // waves
    g(f"s_mul_i32 s56, s2, {c}")
    g("s_add_u32 s56, s56, s20")
    g(f"s_and_b32 s56, s56, {waves-1}")
    g(f"s_mul_i32 s56, s56, {per_wave}")
    g("v_add_u32 v4, s56, v5")
    g(f"s_mul_i32 s60, s2, {a}"); g(f"s_mul_i32 s61, s20, {b}"); g("s_add_u32 s60, s60, s61")
    g("s_lshl_b32 s60, s60, 10")
    g("s_waitcnt lgkmcnt(0)")
    g("s_lshl_b32 s56, s2, 20")
    srd_off(g, 24, 6, 7, 56, 0x100000)
    srd_off(g, 28, 8, 9, 56, 0x100000)
    nl = per_wave // 1024
    tot = 2 * nl
    def issue(n):
        srdn = 24 if n < nl else 28
        i = n % nl
        g(f"s_add_u32 s58, s60, {((i*mul) % nl)*1024}")
        g(f"s_and_b32 s58, s58, {per_wave-1}")
        g(f"buffer_load_dwordx4 {vr(16+4*(n%depth),4)}, v4, {sr(srdn,4)}, s58 offen nt")
    for n in range(depth): issue(n)
    for n in range(tot):
        rem = min(depth, tot - n) - 1
        g(f"s_waitcnt vmcnt({rem})")
        g(f"v_xor_b32 v8, v8, v{16+4*(n%depth)}")
        if n + depth < tot: issue(n + depth)
    g.label(f"L_{name}_end"); g("s_endpgm")
    return g.lines
def build(fn, waves, depth, a, b, mul=1, c=0):
    lines = gen("bw_kernel", waves, depth, a, b, mul, c)
    out = HEADER + f"; @launch kernel=bw_kernel grid=(256,1,1) block=({waves*64},1,1) lds=90000\n"
    out += '.amdgcn_target "amdgcn-amd-amdhsa--gfx950"\n.text\n' + "\n".join(lines) + "\n"
    out += '.section .rodata,"a"\n.p2align 6\n' + kd("bw_kernel", 128 if waves > 8 else 256, 100)
    open(fn, "w").write(out)
import itertools

build("h_16_16.s", 16, 16, 5, 11)
build("h_16_24.s", 16, 24, 5, 11)
build("h_16_8.s", 16, 8, 5, 11)

build("h_8_32.s", 8, 32, 5, 23)
build("h_8_48.s", 8, 48, 5, 23)
build("h_4_48.s", 4, 48, 5, 43)
```

```python
import sys
from gen import G, DPPM, vr, sr, allreduce_to_sgpr, row_allreduce, bf16r, xrow_allreduce, layernorm, unpack8, srd, srd_off, kd, HEADER

KNAME = "sequential_preLN__mha_block_cached__swiglu_ffn__decode_kernel"
WS_AACC = 0x0
WS_OACC = 0x4000
WS_STAMP = 0x90000
WS_SIZE = 0x200000
D_ZFLAG = 128
D_ADONE = 0
D_TICKET = 64
D_FDONE = 192

L_XN = 0
L_QP = 1024
L_MAX = 9216
L_SUM = 9280
L_FLAG = 9344
L_OP = 10240
L_WP = 18432
M_X = 0
M_GU = 8192
M_ACT = 16384
M_FLAG = 16896
M_DN = 17408
M_H = 33792
M_GW = 50176
M_UW = 82944
M_DW = 115712
LDS_TOTAL = 148480
NROLE = 43

def gen(g, STAMP=False, DEPTH=16, SLEEP=8, QBAR=False, ROT=(1,2), FNT="nt"):
    nt = " nt"
    def stamp(idx):
        if not STAMP: return
        g("s_memrealtime s[96:97]")
        g("s_waitcnt lgkmcnt(0)")
        g("v_mov_b32 v126, s96")
        g("v_mov_b32 v127, s97")
        g("s_lshl_b32 s98, s2, 7")
        g(f"s_add_u32 s98, s98, {WS_STAMP + idx*8}")
        g("s_lshl_b32 s99, s20, 15")
        g("s_add_u32 s98, s98, s99")
        g("v_mov_b32 v125, 0")
        g("buffer_store_dwordx2 v[126:127], v125, s[44:47], s98 offen")
        g.vm.append("stamp")
    g.raw(f".globl {KNAME}")
    g.raw(".p2align 8")
    g.raw(f".type {KNAME},@function")
    g.label(KNAME)
    g("s_cmp_ge_u32 s2, 256")
    g("s_cbranch_scc1 L_end")
    g("s_load_dwordx4 s[4:7], s[0:1], 0")
    g("s_load_dwordx4 s[8:11], s[0:1], 16")
    g("s_load_dwordx2 s[12:13], s[0:1], 32")
    g("s_load_dwordx4 s[16:19], s[0:1], 80")
    g("v_lshrrev_b32 v5, 6, v0")
    g("v_and_b32 v1, 63, v0")
    g("v_and_b32 v2, 15, v0")
    g("v_bfe_u32 v3, v0, 4, 2")
    g("v_readfirstlane_b32 s20, v5")
    g("s_and_b32 s21, s2, 31")
    g("s_lshr_b32 s22, s2, 5")
    g("s_mov_b32 s64, 0x00010001")
    g("s_mov_b32 s65, 0x00010001")
    for i in range(1, 16):
        g(f"s_lshl_b64 s[{64+2*i}:{65+2*i}], s[64:65], {i}")
    if ROT:
        g(f"s_mul_i32 s23, s2, {ROT[0]}")
        g(f"s_mul_i32 s56, s20, {ROT[1]}")
        g("s_add_u32 s23, s23, s56")
        g("s_lshl_b32 s23, s23, 10")
    g("v_lshlrev_b32 v5, 4, v1")
    g("s_lshl_b32 s56, s20, 16")
    g("v_add_u32 v4, s56, v5")
    g("s_lshl_b32 s56, s20, 18")
    g("v_lshlrev_b32 v6, 13, v3")
    g("v_lshlrev_b32 v7, 4, v2")
    g("v_add3_u32 v6, v6, v7, s56")
    g("s_waitcnt lgkmcnt(0)")
    g("s_lshl_b32 s56, s22, 10")
    srd_off(g, 40, 4, 5, 56, 1024)
    g("s_lshl_b32 s56, s21, 8")
    g("s_sub_u32 s57, 0x400000, s56")
    g("s_add_u32 s32, s10, s56")
    g("s_addc_u32 s33, s11, 0")
    g("s_and_b32 s33, s33, 0xffff")
    g("s_mov_b32 s34, s57")
    g("s_mov_b32 s35, 0x00020000")
    g("s_lshl_b32 s56, s2, 20")
    srd_off(g, 24, 6, 7, 56, 0x100000)
    srd_off(g, 28, 8, 9, 56, 0x100000)
    g("s_lshl_b32 s56, s21, 17")
    srd_off(g, 36, 12, 13, 56, 0x20000)
    srd(g, 44, 18, 19, WS_SIZE)
    srd(g, 48, 16, 17, 256)
    g.issue("buffer_load_dwordx4 v[24:27], v5, s[40:43], 0 offen", "x")
    for i in range(8):
        g(f"s_mov_b32 s57, {i*32768}")
        g.issue(f"buffer_load_dwordx4 {vr(32+4*i,4)}, v6, s[32:35], s57 offen nt", "wq")
    if QBAR:
        g("s_barrier")
    for e in range(4):
        g(f"v_mov_b32 v{8+e}, 0")
    g("v_lshlrev_b32 v7, 5, v0")
    g("s_cmp_eq_u32 s2, 0")
    g(f"s_cselect_b32 s57, 0, {WS_SIZE}")
    g.issue("buffer_store_dwordx4 v[8:11], v7, s[44:47], s57 offen sc1", "z")
    g.issue("buffer_store_dwordx4 v[8:11], v7, s[44:47], s57 offen offset:16 sc1", "z")
    RING = 64
    def slot(n):
        return RING + 4 * (n % DEPTH)
    cur_soff = [None]
    def issue_stream(n):
        if n < 128:
            srdn = 24 if n < 64 else 28
            i = n % 64
            if ROT:
                g(f"s_add_u32 s58, s23, {i*1024}")
                g("s_and_b32 s58, s58, 0xffff")
                g.issue(f"buffer_load_dwordx4 {vr(slot(n),4)}, v4, {sr(srdn,4)}, s58 offen{nt}", ("s", n))
            else:
                so, imm = (i >> 2) * 4096, (i & 3) * 1024
                if so == 0:
                    sop = "0"
                else:
                    if cur_soff[0] != so:
                        g(f"s_mov_b32 s58, {so}")
                        cur_soff[0] = so
                    sop = "s58"
                off = f" offset:{imm}" if imm else ""
                g.issue(f"buffer_load_dwordx4 {vr(slot(n),4)}, v4, {sr(srdn,4)}, {sop} offen{off}{nt}", ("s", n))
        elif n < 136:
            j = n - 128
            if j == 0:
                g("s_lshl_b32 s59, s20, 13")
            if j == 4:
                g("s_add_u32 s59, s59, 4096")
            off = f" offset:{(j&3)*1024}" if (j & 3) else ""
            g.issue(f"buffer_load_dwordx4 {vr(32+4*j,4)}, v5, s[36:39], s59 offen{off} nt", "wo")
    for n in range(DEPTH):
        issue_stream(n)
    g.wait_vm("x")
    X = list(range(16, 24))
    unpack8(g, 24, X)
    layernorm(g, X, 8, 24, 60, 61)
    g(f"ds_write_b128 v5, v[8:11] offset:{L_XN}")
    g("s_lshl_b32 s56, s20, 6")
    g("v_lshlrev_b32 v7, 1, v3")
    g("v_add_u32 v7, s56, v7")
    g("s_waitcnt lgkmcnt(0)")
    for i in range(8):
        g(f"ds_read_u16 v{16+i}, v7 offset:{L_XN + i*8}")
    for e in range(8):
        g(f"v_mov_b32 v{24+e}, 0")
    g("s_waitcnt lgkmcnt(0)")
    for i in range(8):
        g(f"v_lshlrev_b32 v{8+i}, 16, v{16+i}")
    g.wait_vm("wq")
    for i in range(8):
        for e in range(4):
            g(f"v_dot2c_f32_bf16 v{24+2*e}, v{16+i}, v{32+4*i+e}")
            g(f"v_dot2c_f32_bf16 v{25+2*e}, v{8+i}, v{32+4*i+e}")
    g.nop(3)
    xrow_allreduce(g, list(range(24, 32)), list(range(16, 24)))
    g("s_lshl_b32 s56, s20, 9")
    g("v_lshlrev_b32 v7, 5, v2")
    g("v_add_u32 v6, s56, v7")
    g(f"ds_write_b128 v6, v[24:27] offset:{L_QP}")
    g(f"ds_write_b128 v6, v[28:31] offset:{L_QP+16}")
    g("v_lshl_add_u32 v6, v3, 11, v7")
    g("s_waitcnt lgkmcnt(0)")
    g("s_barrier")
    for k in range(4):
        g(f"ds_read_b128 {vr(32+8*k,4)}, v6 offset:{L_QP + k*512}")
        g(f"ds_read_b128 {vr(36+8*k,4)}, v6 offset:{L_QP + k*512 + 16}")
    g("s_waitcnt lgkmcnt(0)")
    for e in range(8):
        g(f"v_add_f32 v{32+e}, v{32+e}, v{40+e}")
        g(f"v_add_f32 v{48+e}, v{48+e}, v{56+e}")
    for e in range(8):
        g(f"v_add_f32 v{32+e}, v{32+e}, v{48+e}")
    xrow_allreduce(g, list(range(32, 40)), list(range(40, 48)))
    for e in range(4):
        g(f"v_cvt_pk_bf16_f32 v{8+e}, v{32+2*e}, v{33+2*e}")
    for r in range(4):
        g(f"v_mov_b32 v{12+r}, 0")
    GR = 4
    for j in range(64 // GR):
        ns = list(range(j*GR, j*GR + GR))
        g.wait_vm([("s", n) for n in ns])
        for e in range(4):
            for u, n in enumerate(ns):
                c = "0" if e == 0 else f"v{16+u}"
                g(f"v_dot2_f32_bf16 v{16+u}, v{slot(n)+e}, v{8+e}, {c}")
        for n in ns:
            issue_stream(n + DEPTH)
        for lv in (8, 4, 2, 1):
            for u in range(GR):
                g(f"v_add_f32_dpp v{16+u}, v{16+u}, v{16+u} row_ror:{lv} {DPPM}")
        for u, n in enumerate(ns):
            i, r = n % 16, n // 16
            g(f"v_cndmask_b32_e64 v{12+r}, v{12+r}, v{16+u}, s[{64+2*i}:{65+2*i}]")
    for r in range(4):
        bf16r(g, 12+r, 12+r)
        g(f"v_mul_f32 v{12+r}, 0x3db504f3, v{12+r}")
        bf16r(g, 12+r, 12+r)
    g("v_max3_f32 v16, v12, v13, v14")
    g("v_max_f32 v16, v16, v15")
    allreduce_to_sgpr(g, 16, 60, op="max")
    g("v_mov_b32 v16, s60")
    g("s_lshl_b32 s56, s20, 2")
    g("v_mov_b32 v17, s56")
    g(f"ds_write_b32 v17, v16 offset:{L_MAX}")
    g("v_lshlrev_b32 v7, 2, v2")
    g("s_waitcnt lgkmcnt(0)")
    g("s_barrier")
    g("s_or_b32 s56, s2, s20")
    g("s_cmp_lg_u32 s56, 0")
    g("s_cbranch_scc1 L_nozf")
    g("v_mov_b32 v18, 1")
    g("v_mov_b32 v19, 0")
    g("s_mov_b64 s[62:63], exec")
    g("s_mov_b64 exec, 1")
    g(f"buffer_atomic_add v18, v19, s[48:51], 0 offen offset:{D_ZFLAG}")
    g("s_mov_b64 exec, s[62:63]")
    g.label("L_nozf")
    g.vm.append("zf")
    g(f"ds_read_b32 v16, v7 offset:{L_MAX}")
    g("s_waitcnt lgkmcnt(0)")
    row_allreduce(g, 16, op="max")
    for r in range(4):
        g(f"v_sub_f32 v{12+r}, v{12+r}, v16")
        g(f"v_mul_f32 v{12+r}, 0x3fb8aa3b, v{12+r}")
        g(f"v_exp_f32 v{12+r}, v{12+r}")
    g.nop(1)
    g("v_add_f32 v18, v12, v13")
    g("v_add_f32 v19, v14, v15")
    g("v_add_f32 v18, v18, v19")
    allreduce_to_sgpr(g, 18, 60)
    g("v_mov_b32 v18, s60")
    g(f"ds_write_b32 v17, v18 offset:{L_SUM}")
    g("s_waitcnt lgkmcnt(0)")
    g("s_barrier")
    g(f"ds_read_b32 v18, v7 offset:{L_SUM}")
    g("s_waitcnt lgkmcnt(0)")
    row_allreduce(g, 18)
    g.nop(1)
    g("v_readlane_b32 s60, v18, 0")
    g.nop(2)
    g("v_mov_b32 v18, s60")
    g("v_rcp_f32 v19, v18")
    g.nop(1)
    for r in range(4):
        g(f"v_mul_f32 v24, v{12+r}, v19")
        g(f"v_fma_f32 v25, -v24, v18, v{12+r}")
        g(f"v_fma_f32 v24, v25, v19, v24")
        g(f"v_cvt_pk_bf16_f32 v{20+r}, 0, v24")
        g(f"v_cvt_pk_bf16_f32 v{12+r}, v24, 0")
    PLO, PHI = 12, 20
    for e in range(8):
        g(f"v_mov_b32 v{24+e}, 0")
    g.nop(2)
    g.vm = [t for t in g.vm if t != "zf"]
    for j in range(64 // GR):
        ns = list(range(64 + j*GR, 64 + j*GR + GR))
        g.wait_vm([("s", n) for n in ns])
        for u, n in enumerate(ns):
            i, r = (n - 64) % 16, (n - 64) // 16
            for e in range(4):
                g(f"v_dot2c_f32_bf16_dpp v{24+2*e}, v{PLO+r}, v{slot(n)+e} row_newbcast:{i} {DPPM}")
                g(f"v_dot2c_f32_bf16_dpp v{25+2*e}, v{PHI+r}, v{slot(n)+e} row_newbcast:{i} {DPPM}")
            issue_stream(n + DEPTH)
    stamp(0)
    g.nop(3)
    xrow_allreduce(g, list(range(24, 32)), list(range(8, 16)))
    g("s_lshl_b32 s56, s20, 9")
    g("v_lshlrev_b32 v7, 5, v2")
    g("v_add_u32 v6, s56, v7")
    g(f"ds_write_b128 v6, v[24:27] offset:{L_OP}")
    g(f"ds_write_b128 v6, v[28:31] offset:{L_OP+16}")
    g("v_mov_b32 v10, 0")
    g.issue(f"buffer_load_dword v11, v10, s[48:51], 0 offen offset:{D_ZFLAG} sc1", "zfl")
    g("v_lshrrev_b32 v6, 3, v1")
    g("v_and_b32 v7, 7, v1")
    g("s_lshl_b32 s56, s20, 5")
    g("v_lshlrev_b32 v6, 9, v6")
    g("v_lshl_add_u32 v6, v7, 2, v6")
    g("v_add_u32 v6, s56, v6")
    g("s_waitcnt lgkmcnt(0)")
    g("s_barrier")
    g(f"ds_read_b32 v8, v6 offset:{L_OP}")
    g(f"ds_read_b32 v9, v6 offset:{L_OP+4096}")
    g("s_waitcnt lgkmcnt(0)")
    g("v_add_f32 v8, v8, v9")
    g.nop(2)
    g(f"v_add_f32_dpp v8, v8, v8 row_ror:8 {DPPM}")
    xrow_allreduce(g, [8], [9])
    bf16r(g, 8, 8)
    g.nop(1)
    for j in range(8):
        g(f"v_readlane_b32 s{72+j}, v8, {j}")
    g.nop(1)
    for j in range(8):
        g(f"s_lshr_b32 s{64+j}, s{72+j}, 16")
    for e in range(8):
        g(f"v_mov_b32 v{24+e}, 0")
    g.wait_all_vm()
    for j in range(8):
        for e in range(4):
            g(f"v_dot2c_f32_bf16 v{24+2*e}, s{64+j}, v{32+4*j+e}")
            g(f"v_dot2c_f32_bf16 v{25+2*e}, s{72+j}, v{32+4*j+e}")
    g("s_lshl_b32 s56, s20, 11")
    g("v_lshlrev_b32 v6, 5, v1")
    g("v_add_u32 v6, s56, v6")
    g.nop(2)
    g(f"ds_write_b128 v6, v[24:27] offset:{L_WP}")
    g(f"ds_write_b128 v6, v[28:31] offset:{L_WP+16}")
    g("v_and_b32 v6, 511, v0")
    g("v_lshlrev_b32 v6, 2, v6")
    g.label("L_zpoll")
    g("v_readfirstlane_b32 s56, v11")
    g("s_cmp_lg_u32 s56, 0")
    g("s_cbranch_scc1 L_zok")
    g("s_sleep 2")
    g(f"buffer_load_dword v11, v10, s[48:51], 0 offen offset:{D_ZFLAG} sc1")
    g("s_waitcnt vmcnt(0)")
    g("s_branch L_zpoll")
    g.label("L_zok")
    g("s_waitcnt lgkmcnt(0)")
    g("s_barrier")
    g("s_cmp_ge_u32 s20, 8")
    g("s_cbranch_scc1 L_skipred")
    for k in range(16):
        g(f"ds_read_b32 v{8+k}, v6 offset:{L_WP + k*2048}")
    g("s_waitcnt lgkmcnt(0)")
    for k in range(8):
        g(f"v_add_f32 v{8+k}, v{8+k}, v{16+k}")
    for k in range(4):
        g(f"v_add_f32 v{8+k}, v{8+k}, v{12+k}")
    g("v_add_f32 v8, v8, v9")
    g("v_add_f32 v10, v10, v11")
    g("v_add_f32 v8, v8, v10")
    g("s_lshl_b32 s56, s22, 11")
    g(f"s_add_u32 s56, s56, {WS_AACC}")
    g("buffer_atomic_add_f32 v8, v6, s[44:47], s56 offen")
    g.label("L_skipred")
    g("s_waitcnt vmcnt(0)")
    g("s_barrier")
    stamp(1)
    g("s_cmp_lg_u32 s20, 0")
    g("s_cbranch_scc1 L_tk")
    g("v_mov_b32 v8, 1")
    g("v_mov_b32 v10, 1")
    g("v_mov_b32 v9, 0")
    g("s_mov_b64 s[62:63], exec")
    g("s_mov_b64 exec, 1")
    g(f"buffer_atomic_add v10, v9, s[48:51], 0 offen offset:{D_ADONE}")
    g(f"buffer_atomic_add v8, v9, s[48:51], 0 offen offset:{D_TICKET} sc0")
    g("s_waitcnt vmcnt(0)")
    g(f"ds_write_b32 v9, v8 offset:{L_FLAG}")
    g("s_mov_b64 exec, s[62:63]")
    g("s_waitcnt lgkmcnt(0)")
    g.label("L_tk")
    g("s_barrier")
    g("v_mov_b32 v9, 0")
    g(f"ds_read_b32 v8, v9 offset:{L_FLAG}")
    g("s_waitcnt lgkmcnt(0)")
    g("v_readfirstlane_b32 s3, v8")
    g(f"s_cmp_ge_u32 s3, {NROLE}")
    g("s_cbranch_scc1 L_end")
    g("s_barrier")
    g.vm = []
    g("s_load_dwordx4 s[8:11], s[0:1], 48")
    g("s_load_dwordx4 s[12:15], s[0:1], 64")
    g("v_lshlrev_b32 v10, 4, v0")
    g("v_lshrrev_b32 v6, 2, v0")
    g("s_movk_i32 s57, 2752")
    g("v_mul_lo_u32 v6, v6, s57")
    g("v_and_b32 v7, 3, v0")
    g("s_lshl_b32 s56, s3, 6")
    g("v_lshl_add_u32 v6, v7, 4, v6")
    g("v_add_u32 v6, s56, v6")
    g(f"v_add_u32 v7, {M_GW}, v10")
    g(f"v_add_u32 v8, {M_UW}, v10")
    g(f"v_add_u32 v9, {M_DW}, v10")
    g("s_waitcnt lgkmcnt(0)")
    srd(g, 24, 8, 9, 1409024)
    srd(g, 52, 10, 11, 1409024)
    srd(g, 28, 12, 13, 1409024)
    srd(g, 32, 14, 15, 8192)
    srd(g, 36, 4, 5, 8192)
    g("s_mov_b32 s57, 704512")
    g("s_lshl_b32 s58, s3, 15")
    g("s_add_u32 s59, s58, 16384")
    g("buffer_load_dwordx4 v[16:19], v6, s[24:27], 0 offen " + FNT)
    g("buffer_load_dwordx4 v[20:23], v6, s[24:27], s57 offen " + FNT)
    g("buffer_load_dwordx4 v[24:27], v6, s[52:55], 0 offen " + FNT)
    g("buffer_load_dwordx4 v[28:31], v6, s[52:55], s57 offen " + FNT)
    g("buffer_load_dwordx4 v[32:35], v10, s[28:31], s58 offen " + FNT)
    g("buffer_load_dwordx4 v[36:39], v10, s[28:31], s59 offen " + FNT)
    g("buffer_load_dwordx4 v[12:15], v10, s[36:39], 0 offen")
    g("s_lshr_b32 s21, s20, 3")
    g("s_bfe_u32 s22, s20, 0x10002")
    g("s_and_b32 s23, s20, 3")
    g("v_lshrrev_b32 v2, 4, v1")
    g("v_bfe_u32 v3, v1, 2, 2")
    g("v_and_b32 v4, 3, v1")
    g("v_and_b32 v11, 7, v1")
    g("v_lshlrev_b32 v40, 10, v11")
    g("v_lshl_add_u32 v40, v2, 4, v40")
    g("s_lshl_b32 s56, s23, 8")
    g("v_add_u32 v40, s56, v40")
    g("v_lshl_add_u32 v41, v2, 3, v3")
    g("v_lshlrev_b32 v42, 6, v41")
    g("v_lshl_add_u32 v42, v4, 3, v42")
    g("s_lshl_b32 s56, s23, 13")
    g("s_lshl_b32 s57, s22, 5")
    g("s_add_u32 s56, s56, s57")
    g(f"s_mul_i32 s57, s21, {M_UW - M_GW}")
    g("s_add_u32 s56, s56, s57")
    g(f"s_add_u32 s56, s56, {M_GW}")
    g("v_add_u32 v42, s56, v42")
    g("v_lshlrev_b32 v43, 10, v41")
    g("v_lshl_add_u32 v43, v4, 3, v43")
    g("s_lshl_b32 s56, s20, 6")
    g(f"s_add_u32 s56, s56, {M_DW}")
    g("v_add_u32 v43, s56, v43")
    g("v_lshlrev_b32 v44, 6, v11")
    g("v_lshl_add_u32 v44, v2, 4, v44")
    g("v_and_b32 v45, 15, v1")
    g("v_lshlrev_b32 v46, 9, v2")
    g("v_lshl_add_u32 v46, v45, 2, v46")
    g("s_lshl_b32 s56, s23, 1")
    g("s_add_u32 s56, s56, s21")
    g("s_lshl_b32 s56, s56, 10")
    g("s_lshl_b32 s57, s22, 6")
    g("s_add_u32 s56, s56, s57")
    g("v_add_u32 v46, s56, v46")
    g("v_lshlrev_b32 v47, 13, v2")
    g("v_lshl_add_u32 v47, v45, 2, v47")
    g("s_lshl_b32 s56, s20, 7")
    g("v_add_u32 v47, s56, v47")
    g("s_waitcnt vmcnt(1)")
    g("ds_write_b128 v7, v[16:19]")
    g("ds_write_b128 v7, v[20:23] offset:16384")
    g("ds_write_b128 v8, v[24:27]")
    g("ds_write_b128 v8, v[28:31] offset:16384")
    g("ds_write_b128 v9, v[32:35]")
    g("ds_write_b128 v9, v[36:39] offset:16384")
    g("s_cmp_lg_u32 s20, 0")
    g("s_cbranch_scc1 L_polled")
    g("v_mov_b32 v16, 0")
    g.label("L_poll")
    g(f"buffer_load_dword v17, v16, s[48:51], 0 offen offset:{D_ADONE} sc1")
    g("s_waitcnt vmcnt(0)")
    g("v_readfirstlane_b32 s56, v17")
    g("s_cmp_ge_u32 s56, 256")
    g("s_cbranch_scc1 L_polled")
    g(f"s_sleep {SLEEP}")
    g("s_branch L_poll")
    g.label("L_polled")
    g("s_barrier")
    stamp(2)
    g("s_cmp_ge_u32 s20, 8")
    g("s_cbranch_scc1 L_noln")
    g("v_lshlrev_b32 v11, 5, v0")
    g(f"buffer_load_dwordx4 v[16:19], v11, s[44:47], 0 offen offset:{WS_AACC} sc1")
    g(f"buffer_load_dwordx4 v[20:23], v11, s[44:47], 0 offen offset:{WS_AACC+16} sc1")
    g("s_waitcnt vmcnt(0)")
    X = list(range(24, 32))
    unpack8(g, 12, X)
    for e in range(8):
        bf16r(g, 16+e, 16+e)
        g(f"v_add_f32 v{24+e}, v{24+e}, v{16+e}")
        bf16r(g, 24+e, 24+e)
    g(f"ds_write_b128 v11, v[24:27] offset:{M_H}")
    g(f"ds_write_b128 v11, v[28:31] offset:{M_H+16}")
    layernorm(g, X, 12, 32, 60, 61)
    g(f"ds_write_b128 v10, v[12:15] offset:{M_X}")
    g.label("L_noln")
    g("s_waitcnt vmcnt(0) lgkmcnt(0)")
    g("s_barrier")
    stamp(3)
    for st in range(4):
        g(f"ds_read_b128 {vr(48+4*st,4)}, v40 offset:{M_X + st*64}")
        g(f"ds_read_b64_tr_b16 {vr(64+4*st,2)}, v42 offset:{st*2048}")
        g(f"ds_read_b64_tr_b16 {vr(66+4*st,2)}, v42 offset:{st*2048+256}")
    for st in range(4):
        g(f"s_waitcnt lgkmcnt({9-3*st})")
        c = "0" if st == 0 else "v[80:83]"
        g(f"v_mfma_f32_16x16x32_bf16 v[80:83], {vr(48+4*st,4)}, {vr(64+4*st,4)}, {c}")
    g("s_nop 7")
    g("s_nop 3")
    g("s_mov_b32 exec_hi, 0")
    for r in range(4):
        g(f"ds_write_b32 v46, v{80+r} offset:{M_GU + r*128}")
    g("s_mov_b32 exec_hi, -1")
    g("v_lshlrev_b32 v12, 2, v0")
    g("s_waitcnt lgkmcnt(0)")
    g("s_barrier")
    stamp(4)
    g("s_cmp_ge_u32 s20, 4")
    g("s_cbranch_scc1 L_noact")
    for kq in range(4):
        g(f"ds_read_b32 v{16+kq}, v12 offset:{M_GU + kq*2048}")
        g(f"ds_read_b32 v{20+kq}, v12 offset:{M_GU + kq*2048 + 1024}")
    g("s_waitcnt lgkmcnt(0)")
    for base in (16, 20):
        g(f"v_add_f32 v{base}, v{base}, v{base+1}")
        g(f"v_add_f32 v{base+2}, v{base+2}, v{base+3}")
        g(f"v_add_f32 v{base}, v{base}, v{base+2}")
        bf16r(g, base, base)
    g("v_mul_f32 v17, 0xbfb8aa3b, v16")
    g("v_exp_f32 v17, v17")
    g.nop(1)
    g("v_add_f32 v17, 1.0, v17")
    g("v_rcp_f32 v18, v17")
    g.nop(1)
    g("v_mul_f32 v19, v16, v18")
    g("v_fma_f32 v21, -v19, v17, v16")
    g("v_fma_f32 v19, v21, v18, v19")
    g("v_mul_f32 v22, v16, v18")
    g("v_cmp_u_f32 vcc, v19, v19")
    g.nop(2)
    g("v_cndmask_b32 v19, v19, v22, vcc")
    bf16r(g, 19, 19)
    g("v_mul_f32 v19, v19, v20")
    g("v_cvt_pk_bf16_f32 v19, v19, v19")
    g("v_lshrrev_b32 v13, 1, v12")
    g(f"ds_write_b16 v13, v19 offset:{M_ACT}")
    g("s_waitcnt lgkmcnt(0)")
    g.label("L_noact")
    g("s_barrier")
    g(f"ds_read_b128 v[48:51], v44 offset:{M_ACT}")
    for i in range(2):
        g(f"ds_read_b64_tr_b16 {vr(64+4*i,2)}, v43 offset:{i*32}")
        g(f"ds_read_b64_tr_b16 {vr(66+4*i,2)}, v43 offset:{i*32+4096}")
    g("s_waitcnt lgkmcnt(0)")
    for i in range(2):
        g(f"v_mfma_f32_16x16x32_bf16 {vr(80+4*i,4)}, v[48:51], {vr(64+4*i,4)}, 0")
    g("s_nop 7")
    g("s_nop 3")
    g("s_mov_b32 exec_hi, 0")
    for i in range(2):
        for r in range(4):
            g(f"ds_write_b32 v47, v{80+4*i+r} offset:{M_DN + r*2048 + i*64}")
    g("s_mov_b32 exec_hi, -1")
    g("s_waitcnt lgkmcnt(0)")
    g("s_barrier")
    stamp(5)
    for j in range(4):
        g(f"ds_read_b32 v{16+j}, v12 offset:{M_DN + j*4096}")
    g(f"s_mov_b32 s56, {WS_OACC}")
    for j in range(4):
        g(f"s_waitcnt lgkmcnt({3-j})")
        if j:
            g("s_add_u32 s56, s56, 4096")
        g(f"buffer_atomic_add_f32 v{16+j}, v12, s[44:47], s56 offen")
    g("s_waitcnt vmcnt(0)")
    g("s_barrier")
    stamp(6)
    g("s_cmp_lg_u32 s20, 0")
    g("s_cbranch_scc1 L_wait_flag")
    g("v_mov_b32 v8, 1")
    g("v_mov_b32 v9, 0")
    g("s_mov_b64 s[62:63], exec")
    g("s_mov_b64 exec, 1")
    g(f"buffer_atomic_add v8, v9, s[48:51], 0 offen offset:{D_FDONE} sc0")
    g("s_waitcnt vmcnt(0)")
    g(f"ds_write_b32 v9, v8 offset:{M_FLAG}")
    g("s_mov_b64 exec, s[62:63]")
    g("s_waitcnt lgkmcnt(0)")
    g.label("L_wait_flag")
    g("s_barrier")
    g("v_mov_b32 v9, 0")
    g(f"ds_read_b32 v8, v9 offset:{M_FLAG}")
    g("s_waitcnt lgkmcnt(0)")
    g("v_readfirstlane_b32 s56, v8")
    g(f"s_cmp_lg_u32 s56, {NROLE-1}")
    g("s_cbranch_scc1 L_end")
    g(f"s_mov_b32 s56, {WS_OACC}")
    g("buffer_load_dwordx4 v[12:15], v10, s[44:47], s56 offen sc1")
    g(f"ds_read_b128 v[16:19], v10 offset:{M_H}")
    g("v_lshlrev_b32 v11, 3, v0")
    g("s_waitcnt vmcnt(0) lgkmcnt(0)")
    for e in range(4):
        bf16r(g, 12+e, 12+e)
        g(f"v_add_f32 v{12+e}, v{12+e}, v{16+e}")
    g("v_cvt_pk_bf16_f32 v20, v12, v13")
    g("v_cvt_pk_bf16_f32 v21, v14, v15")
    g("buffer_store_dwordx2 v[20:21], v11, s[32:35], 0 offen")
    stamp(7)
    g.label("L_end")
    g("s_endpgm")

def build(**kw):
    g = G(); gen(g, **kw)
    out = HEADER
    out += f"; @launch kernel={KNAME} grid=(256,1,1) block=(1024,1,1) lds={LDS_TOTAL}\n"
    out += '.amdgcn_target "amdgcn-amd-amdhsa--gfx950"\n.text\n'
    out += "\n".join(g.lines) + "\n"
    out += '.section .rodata,"a"\n.p2align 6\n'
    out += kd(KNAME, 128, 102)
    return out

if __name__ == "__main__":
    import argparse
    ap = argparse.ArgumentParser()
    ap.add_argument("-o", default="sequential_preLN__mha_block_cached__swiglu_ffn__decode.s")
    ap.add_argument("--stamp", action="store_true")
    ap.add_argument("--depth", type=int, default=16)
    ap.add_argument("--sleep", type=int, default=8)
    ap.add_argument("--qbar", action="store_true")
    ap.add_argument("--rot", default="1,2")
    ap.add_argument("--fnt", default="nt")
    a = ap.parse_args()
    open(a.o, "w").write(build(STAMP=a.stamp, DEPTH=a.depth, SLEEP=a.sleep, QBAR=a.qbar, ROT=(tuple(int(x) for x in a.rot.split(',')) if a.rot != 'none' else None), FNT=a.fnt))
    print("wrote", a.o)
```

```python
import sys
from gen import G, DPPM, vr, sr, allreduce_to_sgpr, row_allreduce, bf16r, xrow_allreduce, layernorm, unpack8, srd, srd_off, kd, HEADER

KNAME = "sequential_preLN__mha_block_cached__swiglu_ffn__decode_kernel"
WS_AACC = 0x0
WS_OACC = 0x4000
WS_STAMP = 0x90000
WS_SIZE = 0x200000
D_ZFLAG = 128
D_ADONE = 0
D_TICKET = 64
D_FDONE = 192

L_XN = 0
L_QP = 1024
L_MAX = 9216
L_SUM = 9280
L_FLAG = 9344
L_OP = 10240
L_WP = 18432
M_X = 0
M_GU = 8192
M_ACT = 16384
M_FLAG = 16896
M_DN = 17408
M_H = 33792
M_GW = 50176
M_UW = 82944
M_DW = 115712
LDS_TOTAL = 148480
NROLE = 43

def gen(g, STAMP=False, DEPTH=16, SLEEP=8, QBAR=False, ROT=(1,2), FNT="", QNT="", ONT=""):
    nt = " nt"
    def stamp(idx):
        if not STAMP: return
        g("s_memrealtime s[96:97]")
        g("s_waitcnt lgkmcnt(0)")
        g("v_mov_b32 v126, s96")
        g("v_mov_b32 v127, s97")
        g("s_lshl_b32 s98, s2, 7")
        g(f"s_add_u32 s98, s98, {WS_STAMP + idx*8}")
        g("s_lshl_b32 s99, s20, 15")
        g("s_add_u32 s98, s98, s99")
        g("v_mov_b32 v125, 0")
        g("buffer_store_dwordx2 v[126:127], v125, s[44:47], s98 offen")
        g.vm.append("stamp")
    g.raw(f".globl {KNAME}")
    g.raw(".p2align 8")
    g.raw(f".type {KNAME},@function")
    g.label(KNAME)
    g("s_cmp_ge_u32 s2, 256")
    g("s_cbranch_scc1 L_end")
    g("s_load_dwordx4 s[4:7], s[0:1], 0")
    g("s_load_dwordx4 s[8:11], s[0:1], 16")
    g("s_load_dwordx2 s[12:13], s[0:1], 32")
    g("s_load_dwordx4 s[16:19], s[0:1], 80")
    g("v_lshrrev_b32 v5, 6, v0")
    g("v_and_b32 v1, 63, v0")
    g("v_and_b32 v2, 15, v0")
    g("v_bfe_u32 v3, v0, 4, 2")
    g("v_readfirstlane_b32 s20, v5")
    g("s_and_b32 s21, s2, 31")
    g("s_lshr_b32 s22, s2, 5")
    g("s_mov_b32 s64, 0x00010001")
    g("s_mov_b32 s65, 0x00010001")
    for i in range(1, 16):
        g(f"s_lshl_b64 s[{64+2*i}:{65+2*i}], s[64:65], {i}")
    if ROT:
        g(f"s_mul_i32 s23, s2, {ROT[0]}")
        g(f"s_mul_i32 s56, s20, {ROT[1]}")
        g("s_add_u32 s23, s23, s56")
        g("s_lshl_b32 s23, s23, 10")
    g("v_lshlrev_b32 v5, 4, v1")
    g("s_lshl_b32 s56, s20, 16")
    g("v_add_u32 v4, s56, v5")
    g("s_lshl_b32 s56, s20, 18")
    g("v_lshlrev_b32 v6, 13, v3")
    g("v_lshlrev_b32 v7, 4, v2")
    g("v_add3_u32 v6, v6, v7, s56")
    g("s_waitcnt lgkmcnt(0)")
    g("s_lshl_b32 s56, s22, 10")
    srd_off(g, 40, 4, 5, 56, 1024)
    g("s_lshl_b32 s56, s21, 8")
    g("s_sub_u32 s57, 0x400000, s56")
    g("s_add_u32 s32, s10, s56")
    g("s_addc_u32 s33, s11, 0")
    g("s_and_b32 s33, s33, 0xffff")
    g("s_mov_b32 s34, s57")
    g("s_mov_b32 s35, 0x00020000")
    g("s_lshl_b32 s56, s2, 20")
    srd_off(g, 24, 6, 7, 56, 0x100000)
    srd_off(g, 28, 8, 9, 56, 0x100000)
    g("s_lshl_b32 s56, s21, 17")
    srd_off(g, 36, 12, 13, 56, 0x20000)
    srd(g, 44, 18, 19, WS_SIZE)
    srd(g, 48, 16, 17, 256)
    g.issue("buffer_load_dwordx4 v[24:27], v5, s[40:43], 0 offen", "x")
    for i in range(8):
        g(f"s_mov_b32 s57, {i*32768}")
        g.issue(f"buffer_load_dwordx4 {vr(32+4*i,4)}, v6, s[32:35], s57 offen" + QNT, "wq")
    if QBAR:
        g("s_barrier")
    for e in range(4):
        g(f"v_mov_b32 v{8+e}, 0")
    g("v_lshlrev_b32 v7, 5, v0")
    g("s_cmp_eq_u32 s2, 0")
    g(f"s_cselect_b32 s57, 0, {WS_SIZE}")
    g.issue("buffer_store_dwordx4 v[8:11], v7, s[44:47], s57 offen sc1", "z")
    g.issue("buffer_store_dwordx4 v[8:11], v7, s[44:47], s57 offen offset:16 sc1", "z")
    RING = 64
    def slot(n):
        return RING + 4 * (n % DEPTH)
    cur_soff = [None]
    def issue_stream(n):
        if n < 128:
            srdn = 24 if n < 64 else 28
            i = n % 64
            if ROT:
                g(f"s_add_u32 s58, s23, {i*1024}")
                g("s_and_b32 s58, s58, 0xffff")
                g.issue(f"buffer_load_dwordx4 {vr(slot(n),4)}, v4, {sr(srdn,4)}, s58 offen{nt}", ("s", n))
            else:
                so, imm = (i >> 2) * 4096, (i & 3) * 1024
                if so == 0:
                    sop = "0"
                else:
                    if cur_soff[0] != so:
                        g(f"s_mov_b32 s58, {so}")
                        cur_soff[0] = so
                    sop = "s58"
                off = f" offset:{imm}" if imm else ""
                g.issue(f"buffer_load_dwordx4 {vr(slot(n),4)}, v4, {sr(srdn,4)}, {sop} offen{off}{nt}", ("s", n))
        elif n < 136:
            j = n - 128
            if j == 0:
                g("s_lshl_b32 s59, s20, 13")
            if j == 4:
                g("s_add_u32 s59, s59, 4096")
            off = f" offset:{(j&3)*1024}" if (j & 3) else ""
            g.issue(f"buffer_load_dwordx4 {vr(32+4*j,4)}, v5, s[36:39], s59 offen{off}" + ONT, "wo")
    for n in range(DEPTH):
        issue_stream(n)
    g.wait_vm("x")
    X = list(range(16, 24))
    unpack8(g, 24, X)
    layernorm(g, X, 8, 24, 60, 61)
    g(f"ds_write_b128 v5, v[8:11] offset:{L_XN}")
    g("s_lshl_b32 s56, s20, 6")
    g("v_lshlrev_b32 v7, 1, v3")
    g("v_add_u32 v7, s56, v7")
    g("s_waitcnt lgkmcnt(0)")
    for i in range(8):
        g(f"ds_read_u16 v{16+i}, v7 offset:{L_XN + i*8}")
    for e in range(8):
        g(f"v_mov_b32 v{24+e}, 0")
    g("s_waitcnt lgkmcnt(0)")
    for i in range(8):
        g(f"v_lshlrev_b32 v{8+i}, 16, v{16+i}")
    g.wait_vm("wq")
    for i in range(8):
        for e in range(4):
            g(f"v_dot2c_f32_bf16 v{24+2*e}, v{16+i}, v{32+4*i+e}")
            g(f"v_dot2c_f32_bf16 v{25+2*e}, v{8+i}, v{32+4*i+e}")
    g.nop(3)
    xrow_allreduce(g, list(range(24, 32)), list(range(16, 24)))
    g("s_lshl_b32 s56, s20, 9")
    g("v_lshlrev_b32 v7, 5, v2")
    g("v_add_u32 v6, s56, v7")
    g(f"ds_write_b128 v6, v[24:27] offset:{L_QP}")
    g(f"ds_write_b128 v6, v[28:31] offset:{L_QP+16}")
    g("v_lshl_add_u32 v6, v3, 11, v7")
    g("s_waitcnt lgkmcnt(0)")
    g("s_barrier")
    for k in range(4):
        g(f"ds_read_b128 {vr(32+8*k,4)}, v6 offset:{L_QP + k*512}")
        g(f"ds_read_b128 {vr(36+8*k,4)}, v6 offset:{L_QP + k*512 + 16}")
    g("s_waitcnt lgkmcnt(0)")
    for e in range(8):
        g(f"v_add_f32 v{32+e}, v{32+e}, v{40+e}")
        g(f"v_add_f32 v{48+e}, v{48+e}, v{56+e}")
    for e in range(8):
        g(f"v_add_f32 v{32+e}, v{32+e}, v{48+e}")
    xrow_allreduce(g, list(range(32, 40)), list(range(40, 48)))
    for e in range(4):
        g(f"v_cvt_pk_bf16_f32 v{8+e}, v{32+2*e}, v{33+2*e}")
    for r in range(4):
        g(f"v_mov_b32 v{12+r}, 0")
    GR = 4
    for j in range(64 // GR):
        ns = list(range(j*GR, j*GR + GR))
        g.wait_vm([("s", n) for n in ns])
        for e in range(4):
            for u, n in enumerate(ns):
                c = "0" if e == 0 else f"v{16+u}"
                g(f"v_dot2_f32_bf16 v{16+u}, v{slot(n)+e}, v{8+e}, {c}")
        for n in ns:
            issue_stream(n + DEPTH)
        for lv in (8, 4, 2, 1):
            for u in range(GR):
                g(f"v_add_f32_dpp v{16+u}, v{16+u}, v{16+u} row_ror:{lv} {DPPM}")
        for u, n in enumerate(ns):
            i, r = n % 16, n // 16
            g(f"v_cndmask_b32_e64 v{12+r}, v{12+r}, v{16+u}, s[{64+2*i}:{65+2*i}]")
    for r in range(4):
        bf16r(g, 12+r, 12+r)
        g(f"v_mul_f32 v{12+r}, 0x3db504f3, v{12+r}")
        bf16r(g, 12+r, 12+r)
    g("v_max3_f32 v16, v12, v13, v14")
    g("v_max_f32 v16, v16, v15")
    allreduce_to_sgpr(g, 16, 60, op="max")
    g("v_mov_b32 v16, s60")
    g("s_lshl_b32 s56, s20, 2")
    g("v_mov_b32 v17, s56")
    g(f"ds_write_b32 v17, v16 offset:{L_MAX}")
    g("v_lshlrev_b32 v7, 2, v2")
    g("s_waitcnt lgkmcnt(0)")
    g("s_barrier")
    g("s_or_b32 s56, s2, s20")
    g("s_cmp_lg_u32 s56, 0")
    g("s_cbranch_scc1 L_nozf")
    g("v_mov_b32 v18, 1")
    g("v_mov_b32 v19, 0")
    g("s_mov_b64 s[62:63], exec")
    g("s_mov_b64 exec, 1")
    g(f"buffer_atomic_add v18, v19, s[48:51], 0 offen offset:{D_ZFLAG}")
    g("s_mov_b64 exec, s[62:63]")
    g.label("L_nozf")
    g.vm.append("zf")
    g(f"ds_read_b32 v16, v7 offset:{L_MAX}")
    g("s_waitcnt lgkmcnt(0)")
    row_allreduce(g, 16, op="max")
    for r in range(4):
        g(f"v_sub_f32 v{12+r}, v{12+r}, v16")
        g(f"v_mul_f32 v{12+r}, 0x3fb8aa3b, v{12+r}")
        g(f"v_exp_f32 v{12+r}, v{12+r}")
    g.nop(1)
    g("v_add_f32 v18, v12, v13")
    g("v_add_f32 v19, v14, v15")
    g("v_add_f32 v18, v18, v19")
    allreduce_to_sgpr(g, 18, 60)
    g("v_mov_b32 v18, s60")
    g(f"ds_write_b32 v17, v18 offset:{L_SUM}")
    g("s_waitcnt lgkmcnt(0)")
    g("s_barrier")
    g(f"ds_read_b32 v18, v7 offset:{L_SUM}")
    g("s_waitcnt lgkmcnt(0)")
    row_allreduce(g, 18)
    g.nop(1)
    g("v_readlane_b32 s60, v18, 0")
    g.nop(2)
    g("v_mov_b32 v18, s60")
    g("v_rcp_f32 v19, v18")
    g.nop(1)
    for r in range(4):
        g(f"v_mul_f32 v24, v{12+r}, v19")
        g(f"v_fma_f32 v25, -v24, v18, v{12+r}")
        g(f"v_fma_f32 v24, v25, v19, v24")
        g(f"v_cvt_pk_bf16_f32 v{20+r}, 0, v24")
        g(f"v_cvt_pk_bf16_f32 v{12+r}, v24, 0")
    PLO, PHI = 12, 20
    for e in range(8):
        g(f"v_mov_b32 v{24+e}, 0")
    g.nop(2)
    g.vm = [t for t in g.vm if t != "zf"]
    for j in range(64 // GR):
        ns = list(range(64 + j*GR, 64 + j*GR + GR))
        g.wait_vm([("s", n) for n in ns])
        for u, n in enumerate(ns):
            i, r = (n - 64) % 16, (n - 64) // 16
            for e in range(4):
                g(f"v_dot2c_f32_bf16_dpp v{24+2*e}, v{PLO+r}, v{slot(n)+e} row_newbcast:{i} {DPPM}")
                g(f"v_dot2c_f32_bf16_dpp v{25+2*e}, v{PHI+r}, v{slot(n)+e} row_newbcast:{i} {DPPM}")
            issue_stream(n + DEPTH)
    stamp(0)
    g.nop(3)
    xrow_allreduce(g, list(range(24, 32)), list(range(8, 16)))
    g("s_lshl_b32 s56, s20, 9")
    g("v_lshlrev_b32 v7, 5, v2")
    g("v_add_u32 v6, s56, v7")
    g(f"ds_write_b128 v6, v[24:27] offset:{L_OP}")
    g(f"ds_write_b128 v6, v[28:31] offset:{L_OP+16}")
    g("v_mov_b32 v10, 0")
    g.issue(f"buffer_load_dword v11, v10, s[48:51], 0 offen offset:{D_ZFLAG} sc1", "zfl")
    g("v_lshrrev_b32 v6, 3, v1")
    g("v_and_b32 v7, 7, v1")
    g("s_lshl_b32 s56, s20, 5")
    g("v_lshlrev_b32 v6, 9, v6")
    g("v_lshl_add_u32 v6, v7, 2, v6")
    g("v_add_u32 v6, s56, v6")
    g("s_waitcnt lgkmcnt(0)")
    g("s_barrier")
    g(f"ds_read_b32 v8, v6 offset:{L_OP}")
    g(f"ds_read_b32 v9, v6 offset:{L_OP+4096}")
    g("s_waitcnt lgkmcnt(0)")
    g("v_add_f32 v8, v8, v9")
    g.nop(2)
    g(f"v_add_f32_dpp v8, v8, v8 row_ror:8 {DPPM}")
    xrow_allreduce(g, [8], [9])
    bf16r(g, 8, 8)
    g.nop(1)
    for j in range(8):
        g(f"v_readlane_b32 s{72+j}, v8, {j}")
    g.nop(1)
    for j in range(8):
        g(f"s_lshr_b32 s{64+j}, s{72+j}, 16")
    for e in range(8):
        g(f"v_mov_b32 v{24+e}, 0")
    g.wait_all_vm()
    for j in range(8):
        for e in range(4):
            g(f"v_dot2c_f32_bf16 v{24+2*e}, s{64+j}, v{32+4*j+e}")
            g(f"v_dot2c_f32_bf16 v{25+2*e}, s{72+j}, v{32+4*j+e}")
    g("s_lshl_b32 s56, s20, 11")
    g("v_lshlrev_b32 v6, 5, v1")
    g("v_add_u32 v6, s56, v6")
    g.nop(2)
    g(f"ds_write_b128 v6, v[24:27] offset:{L_WP}")
    g(f"ds_write_b128 v6, v[28:31] offset:{L_WP+16}")
    g("v_and_b32 v6, 511, v0")
    g("v_lshlrev_b32 v6, 2, v6")
    g.label("L_zpoll")
    g("v_readfirstlane_b32 s56, v11")
    g("s_cmp_lg_u32 s56, 0")
    g("s_cbranch_scc1 L_zok")
    g("s_sleep 2")
    g(f"buffer_load_dword v11, v10, s[48:51], 0 offen offset:{D_ZFLAG} sc1")
    g("s_waitcnt vmcnt(0)")
    g("s_branch L_zpoll")
    g.label("L_zok")
    g("s_waitcnt lgkmcnt(0)")
    g("s_barrier")
    g("s_cmp_ge_u32 s20, 8")
    g("s_cbranch_scc1 L_skipred")
    for k in range(16):
        g(f"ds_read_b32 v{8+k}, v6 offset:{L_WP + k*2048}")
    g("s_waitcnt lgkmcnt(0)")
    for k in range(8):
        g(f"v_add_f32 v{8+k}, v{8+k}, v{16+k}")
    for k in range(4):
        g(f"v_add_f32 v{8+k}, v{8+k}, v{12+k}")
    g("v_add_f32 v8, v8, v9")
    g("v_add_f32 v10, v10, v11")
    g("v_add_f32 v8, v8, v10")
    g("s_lshl_b32 s56, s22, 11")
    g(f"s_add_u32 s56, s56, {WS_AACC}")
    g("buffer_atomic_add_f32 v8, v6, s[44:47], s56 offen")
    g.label("L_skipred")
    g("s_waitcnt vmcnt(0)")
    g("s_barrier")
    stamp(1)
    g("s_cmp_lg_u32 s20, 0")
    g("s_cbranch_scc1 L_tk")
    g("v_mov_b32 v8, 1")
    g("v_mov_b32 v10, 1")
    g("v_mov_b32 v9, 0")
    g("s_mov_b64 s[62:63], exec")
    g("s_mov_b64 exec, 1")
    g(f"buffer_atomic_add v10, v9, s[48:51], 0 offen offset:{D_ADONE}")
    g(f"buffer_atomic_add v8, v9, s[48:51], 0 offen offset:{D_TICKET} sc0")
    g("s_waitcnt vmcnt(0)")
    g(f"ds_write_b32 v9, v8 offset:{L_FLAG}")
    g("s_mov_b64 exec, s[62:63]")
    g("s_waitcnt lgkmcnt(0)")
    g.label("L_tk")
    g("s_barrier")
    g("v_mov_b32 v9, 0")
    g(f"ds_read_b32 v8, v9 offset:{L_FLAG}")
    g("s_waitcnt lgkmcnt(0)")
    g("v_readfirstlane_b32 s3, v8")
    g(f"s_cmp_ge_u32 s3, {NROLE}")
    g("s_cbranch_scc1 L_end")
    g("s_barrier")
    g.vm = []
    g("s_load_dwordx4 s[8:11], s[0:1], 48")
    g("s_load_dwordx4 s[12:15], s[0:1], 64")
    g("v_lshlrev_b32 v10, 4, v0")
    g("v_lshrrev_b32 v6, 2, v0")
    g("s_movk_i32 s57, 2752")
    g("v_mul_lo_u32 v6, v6, s57")
    g("v_and_b32 v7, 3, v0")
    g("s_lshl_b32 s56, s3, 6")
    g("v_lshl_add_u32 v6, v7, 4, v6")
    g("v_add_u32 v6, s56, v6")
    g(f"v_add_u32 v7, {M_GW}, v10")
    g(f"v_add_u32 v8, {M_UW}, v10")
    g(f"v_add_u32 v9, {M_DW}, v10")
    g("s_waitcnt lgkmcnt(0)")
    srd(g, 24, 8, 9, 1409024)
    srd(g, 52, 10, 11, 1409024)
    srd(g, 28, 12, 13, 1409024)
    srd(g, 32, 14, 15, 8192)
    srd(g, 36, 4, 5, 8192)
    g("s_mov_b32 s57, 704512")
    g("s_lshl_b32 s58, s3, 15")
    g("s_add_u32 s59, s58, 16384")
    g("buffer_load_dwordx4 v[16:19], v6, s[24:27], 0 offen " + FNT)
    g("buffer_load_dwordx4 v[20:23], v6, s[24:27], s57 offen " + FNT)
    g("buffer_load_dwordx4 v[24:27], v6, s[52:55], 0 offen " + FNT)
    g("buffer_load_dwordx4 v[28:31], v6, s[52:55], s57 offen " + FNT)
    g("buffer_load_dwordx4 v[32:35], v10, s[28:31], s58 offen " + FNT)
    g("buffer_load_dwordx4 v[36:39], v10, s[28:31], s59 offen " + FNT)
    g("buffer_load_dwordx4 v[12:15], v10, s[36:39], 0 offen")
    g("s_lshr_b32 s21, s20, 3")
    g("s_bfe_u32 s22, s20, 0x10002")
    g("s_and_b32 s23, s20, 3")
    g("v_lshrrev_b32 v2, 4, v1")
    g("v_bfe_u32 v3, v1, 2, 2")
    g("v_and_b32 v4, 3, v1")
    g("v_and_b32 v11, 7, v1")
    g("v_lshlrev_b32 v40, 10, v11")
    g("v_lshl_add_u32 v40, v2, 4, v40")
    g("s_lshl_b32 s56, s23, 8")
    g("v_add_u32 v40, s56, v40")
    g("v_lshl_add_u32 v41, v2, 3, v3")
    g("v_lshlrev_b32 v42, 6, v41")
    g("v_lshl_add_u32 v42, v4, 3, v42")
    g("s_lshl_b32 s56, s23, 13")
    g("s_lshl_b32 s57, s22, 5")
    g("s_add_u32 s56, s56, s57")
    g(f"s_mul_i32 s57, s21, {M_UW - M_GW}")
    g("s_add_u32 s56, s56, s57")
    g(f"s_add_u32 s56, s56, {M_GW}")
    g("v_add_u32 v42, s56, v42")
    g("v_lshlrev_b32 v43, 10, v41")
    g("v_lshl_add_u32 v43, v4, 3, v43")
    g("s_lshl_b32 s56, s20, 6")
    g(f"s_add_u32 s56, s56, {M_DW}")
    g("v_add_u32 v43, s56, v43")
    g("v_lshlrev_b32 v44, 6, v11")
    g("v_lshl_add_u32 v44, v2, 4, v44")
    g("v_and_b32 v45, 15, v1")
    g("v_lshlrev_b32 v46, 9, v2")
    g("v_lshl_add_u32 v46, v45, 2, v46")
    g("s_lshl_b32 s56, s23, 1")
    g("s_add_u32 s56, s56, s21")
    g("s_lshl_b32 s56, s56, 10")
    g("s_lshl_b32 s57, s22, 6")
    g("s_add_u32 s56, s56, s57")
    g("v_add_u32 v46, s56, v46")
    g("v_lshlrev_b32 v47, 13, v2")
    g("v_lshl_add_u32 v47, v45, 2, v47")
    g("s_lshl_b32 s56, s20, 7")
    g("v_add_u32 v47, s56, v47")
    g("s_waitcnt vmcnt(1)")
    g("ds_write_b128 v7, v[16:19]")
    g("ds_write_b128 v7, v[20:23] offset:16384")
    g("ds_write_b128 v8, v[24:27]")
    g("ds_write_b128 v8, v[28:31] offset:16384")
    g("ds_write_b128 v9, v[32:35]")
    g("ds_write_b128 v9, v[36:39] offset:16384")
    g("s_cmp_lg_u32 s20, 0")
    g("s_cbranch_scc1 L_polled")
    g("v_mov_b32 v16, 0")
    g.label("L_poll")
    g(f"buffer_load_dword v17, v16, s[48:51], 0 offen offset:{D_ADONE} sc1")
    g("s_waitcnt vmcnt(0)")
    g("v_readfirstlane_b32 s56, v17")
    g("s_cmp_ge_u32 s56, 256")
    g("s_cbranch_scc1 L_polled")
    g(f"s_sleep {SLEEP}")
    g("s_branch L_poll")
    g.label("L_polled")
    g("s_barrier")
    stamp(2)
    g("s_cmp_ge_u32 s20, 8")
    g("s_cbranch_scc1 L_noln")
    g("v_lshlrev_b32 v11, 5, v0")
    g(f"buffer_load_dwordx4 v[16:19], v11, s[44:47], 0 offen offset:{WS_AACC} sc1")
    g(f"buffer_load_dwordx4 v[20:23], v11, s[44:47], 0 offen offset:{WS_AACC+16} sc1")
    g("s_waitcnt vmcnt(0)")
    X = list(range(24, 32))
    unpack8(g, 12, X)
    for e in range(8):
        bf16r(g, 16+e, 16+e)
        g(f"v_add_f32 v{24+e}, v{24+e}, v{16+e}")
        bf16r(g, 24+e, 24+e)
    g(f"ds_write_b128 v11, v[24:27] offset:{M_H}")
    g(f"ds_write_b128 v11, v[28:31] offset:{M_H+16}")
    layernorm(g, X, 12, 32, 60, 61)
    g(f"ds_write_b128 v10, v[12:15] offset:{M_X}")
    g.label("L_noln")
    g("s_waitcnt vmcnt(0) lgkmcnt(0)")
    g("s_barrier")
    stamp(3)
    for st in range(4):
        g(f"ds_read_b128 {vr(48+4*st,4)}, v40 offset:{M_X + st*64}")
        g(f"ds_read_b64_tr_b16 {vr(64+4*st,2)}, v42 offset:{st*2048}")
        g(f"ds_read_b64_tr_b16 {vr(66+4*st,2)}, v42 offset:{st*2048+256}")
    for st in range(4):
        g(f"s_waitcnt lgkmcnt({9-3*st})")
        c = "0" if st == 0 else "v[80:83]"
        g(f"v_mfma_f32_16x16x32_bf16 v[80:83], {vr(48+4*st,4)}, {vr(64+4*st,4)}, {c}")
    g("s_nop 7")
    g("s_nop 3")
    g("s_mov_b32 exec_hi, 0")
    for r in range(4):
        g(f"ds_write_b32 v46, v{80+r} offset:{M_GU + r*128}")
    g("s_mov_b32 exec_hi, -1")
    g("v_lshlrev_b32 v12, 2, v0")
    g("s_waitcnt lgkmcnt(0)")
    g("s_barrier")
    stamp(4)
    g("s_cmp_ge_u32 s20, 4")
    g("s_cbranch_scc1 L_noact")
    for kq in range(4):
        g(f"ds_read_b32 v{16+kq}, v12 offset:{M_GU + kq*2048}")
        g(f"ds_read_b32 v{20+kq}, v12 offset:{M_GU + kq*2048 + 1024}")
    g("s_waitcnt lgkmcnt(0)")
    for base in (16, 20):
        g(f"v_add_f32 v{base}, v{base}, v{base+1}")
        g(f"v_add_f32 v{base+2}, v{base+2}, v{base+3}")
        g(f"v_add_f32 v{base}, v{base}, v{base+2}")
        bf16r(g, base, base)
    g("v_mul_f32 v17, 0xbfb8aa3b, v16")
    g("v_exp_f32 v17, v17")
    g.nop(1)
    g("v_add_f32 v17, 1.0, v17")
    g("v_rcp_f32 v18, v17")
    g.nop(1)
    g("v_mul_f32 v19, v16, v18")
    g("v_fma_f32 v21, -v19, v17, v16")
    g("v_fma_f32 v19, v21, v18, v19")
    g("v_mul_f32 v22, v16, v18")
    g("v_cmp_u_f32 vcc, v19, v19")
    g.nop(2)
    g("v_cndmask_b32 v19, v19, v22, vcc")
    bf16r(g, 19, 19)
    g("v_mul_f32 v19, v19, v20")
    g("v_cvt_pk_bf16_f32 v19, v19, v19")
    g("v_lshrrev_b32 v13, 1, v12")
    g(f"ds_write_b16 v13, v19 offset:{M_ACT}")
    g("s_waitcnt lgkmcnt(0)")
    g.label("L_noact")
    g("s_barrier")
    g(f"ds_read_b128 v[48:51], v44 offset:{M_ACT}")
    for i in range(2):
        g(f"ds_read_b64_tr_b16 {vr(64+4*i,2)}, v43 offset:{i*32}")
        g(f"ds_read_b64_tr_b16 {vr(66+4*i,2)}, v43 offset:{i*32+4096}")
    g("s_waitcnt lgkmcnt(0)")
    for i in range(2):
        g(f"v_mfma_f32_16x16x32_bf16 {vr(80+4*i,4)}, v[48:51], {vr(64+4*i,4)}, 0")
    g("s_nop 7")
    g("s_nop 3")
    g("s_mov_b32 exec_hi, 0")
    for i in range(2):
        for r in range(4):
            g(f"ds_write_b32 v47, v{80+4*i+r} offset:{M_DN + r*2048 + i*64}")
    g("s_mov_b32 exec_hi, -1")
    g("s_waitcnt lgkmcnt(0)")
    g("s_barrier")
    stamp(5)
    for j in range(4):
        g(f"ds_read_b32 v{16+j}, v12 offset:{M_DN + j*4096}")
    g(f"s_mov_b32 s56, {WS_OACC}")
    for j in range(4):
        g(f"s_waitcnt lgkmcnt({3-j})")
        if j:
            g("s_add_u32 s56, s56, 4096")
        g(f"buffer_atomic_add_f32 v{16+j}, v12, s[44:47], s56 offen")
    g("s_waitcnt vmcnt(0)")
    g("s_barrier")
    stamp(6)
    g("s_cmp_lg_u32 s20, 0")
    g("s_cbranch_scc1 L_wait_flag")
    g("v_mov_b32 v8, 1")
    g("v_mov_b32 v9, 0")
    g("s_mov_b64 s[62:63], exec")
    g("s_mov_b64 exec, 1")
    g(f"buffer_atomic_add v8, v9, s[48:51], 0 offen offset:{D_FDONE} sc0")
    g("s_waitcnt vmcnt(0)")
    g(f"ds_write_b32 v9, v8 offset:{M_FLAG}")
    g("s_mov_b64 exec, s[62:63]")
    g("s_waitcnt lgkmcnt(0)")
    g.label("L_wait_flag")
    g("s_barrier")
    g("v_mov_b32 v9, 0")
    g(f"ds_read_b32 v8, v9 offset:{M_FLAG}")
    g("s_waitcnt lgkmcnt(0)")
    g("v_readfirstlane_b32 s56, v8")
    g(f"s_cmp_lg_u32 s56, {NROLE-1}")
    g("s_cbranch_scc1 L_end")
    g(f"s_mov_b32 s56, {WS_OACC}")
    g("buffer_load_dwordx4 v[12:15], v10, s[44:47], s56 offen sc1")
    g(f"ds_read_b128 v[16:19], v10 offset:{M_H}")
    g("v_lshlrev_b32 v11, 3, v0")
    g("s_waitcnt vmcnt(0) lgkmcnt(0)")
    for e in range(4):
        bf16r(g, 12+e, 12+e)
        g(f"v_add_f32 v{12+e}, v{12+e}, v{16+e}")
    g("v_cvt_pk_bf16_f32 v20, v12, v13")
    g("v_cvt_pk_bf16_f32 v21, v14, v15")
    g("buffer_store_dwordx2 v[20:21], v11, s[32:35], 0 offen")
    stamp(7)
    g.label("L_end")
    g("s_endpgm")

def build(**kw):
    g = G(); gen(g, **kw)
    out = HEADER
    out += f"; @launch kernel={KNAME} grid=(256,1,1) block=(1024,1,1) lds={LDS_TOTAL}\n"
    out += '.amdgcn_target "amdgcn-amd-amdhsa--gfx950"\n.text\n'
    out += "\n".join(g.lines) + "\n"
    out += '.section .rodata,"a"\n.p2align 6\n'
    out += kd(KNAME, 128, 102)
    return out

if __name__ == "__main__":
    import argparse
    ap = argparse.ArgumentParser()
    ap.add_argument("-o", default="sequential_preLN__mha_block_cached__swiglu_ffn__decode.s")
    ap.add_argument("--stamp", action="store_true")
    ap.add_argument("--depth", type=int, default=16)
    ap.add_argument("--sleep", type=int, default=8)
    ap.add_argument("--qbar", action="store_true")
    ap.add_argument("--rot", default="1,2")
    ap.add_argument("--fnt", default="")
    ap.add_argument("--qnt", default="")
    ap.add_argument("--ont", default="")
    a = ap.parse_args()
    open(a.o, "w").write(build(STAMP=a.stamp, DEPTH=a.depth, SLEEP=a.sleep, QBAR=a.qbar, ROT=(tuple(int(x) for x in a.rot.split(',')) if a.rot != 'none' else None), FNT=a.fnt, QNT=(' '+a.qnt if a.qnt else ''), ONT=(' '+a.ont if a.ont else '')))
    print("wrote", a.o)
```

```python
import sys
from gen import G, DPPM, vr, sr, allreduce_to_sgpr, row_allreduce, bf16r, xrow_allreduce, layernorm, unpack8, srd, srd_off, kd, HEADER

KNAME = "sequential_preLN__mha_block_cached__swiglu_ffn__decode_kernel"
WS_AACC = 0x0
WS_OACC = 0x4000
WS_STAMP = 0x90000
WS_SIZE = 0x200000
D_ZFLAG = 128
D_ADONE = 0
D_TICKET = 64
D_FDONE = 192

L_XN = 0
L_QP = 1024
L_MAX = 9216
L_SUM = 9280
L_FLAG = 9344
L_OP = 10240
L_WP = 18432
M_X = 0
M_GU = 8192
M_ACT = 16384
M_FLAG = 16896
M_DN = 17408
M_H = 33792
M_GW = 50176
M_UW = 82944
M_DW = 115712
LDS_TOTAL = 148480
NROLE = 43

def gen(g, STAMP=False, DEPTH=16, SLEEP=8, QBAR=False, ROT=(5,4), FNT="", QNT="", ONT=""):
    nt = " nt"
    def stamp(idx):
        if not STAMP: return
        g("s_memrealtime s[96:97]")
        g("s_waitcnt lgkmcnt(0)")
        g("v_mov_b32 v126, s96")
        g("v_mov_b32 v127, s97")
        g("s_lshl_b32 s98, s2, 7")
        g(f"s_add_u32 s98, s98, {WS_STAMP + idx*8}")
        g("s_lshl_b32 s99, s20, 15")
        g("s_add_u32 s98, s98, s99")
        g("v_mov_b32 v125, 0")
        g("buffer_store_dwordx2 v[126:127], v125, s[44:47], s98 offen")
        g.vm.append("stamp")
    g.raw(f".globl {KNAME}")
    g.raw(".p2align 8")
    g.raw(f".type {KNAME},@function")
    g.label(KNAME)
    g("s_cmp_ge_u32 s2, 256")
    g("s_cbranch_scc1 L_end")
    g("s_load_dwordx4 s[4:7], s[0:1], 0")
    g("s_load_dwordx4 s[8:11], s[0:1], 16")
    g("s_load_dwordx2 s[12:13], s[0:1], 32")
    g("s_load_dwordx4 s[16:19], s[0:1], 80")
    g("v_lshrrev_b32 v5, 6, v0")
    g("v_and_b32 v1, 63, v0")
    g("v_and_b32 v2, 15, v0")
    g("v_bfe_u32 v3, v0, 4, 2")
    g("v_readfirstlane_b32 s20, v5")
    g("s_and_b32 s21, s2, 31")
    g("s_lshr_b32 s22, s2, 5")
    g("s_mov_b32 s64, 0x00010001")
    g("s_mov_b32 s65, 0x00010001")
    for i in range(1, 16):
        g(f"s_lshl_b64 s[{64+2*i}:{65+2*i}], s[64:65], {i}")
    if ROT:
        g(f"s_mul_i32 s23, s2, {ROT[0]}")
        g(f"s_mul_i32 s56, s20, {ROT[1]}")
        g("s_add_u32 s23, s23, s56")
        g("s_lshl_b32 s23, s23, 10")
    g("v_lshlrev_b32 v5, 4, v1")
    g("s_lshl_b32 s56, s20, 16")
    g("v_add_u32 v4, s56, v5")
    g("s_lshl_b32 s56, s20, 18")
    g("v_lshlrev_b32 v6, 13, v3")
    g("v_lshlrev_b32 v7, 4, v2")
    g("v_add3_u32 v6, v6, v7, s56")
    g("s_waitcnt lgkmcnt(0)")
    g("s_lshl_b32 s56, s22, 10")
    srd_off(g, 40, 4, 5, 56, 1024)
    g("s_lshl_b32 s56, s21, 8")
    g("s_sub_u32 s57, 0x400000, s56")
    g("s_add_u32 s32, s10, s56")
    g("s_addc_u32 s33, s11, 0")
    g("s_and_b32 s33, s33, 0xffff")
    g("s_mov_b32 s34, s57")
    g("s_mov_b32 s35, 0x00020000")
    g("s_lshl_b32 s56, s2, 20")
    srd_off(g, 24, 6, 7, 56, 0x100000)
    srd_off(g, 28, 8, 9, 56, 0x100000)
    g("s_lshl_b32 s56, s21, 17")
    srd_off(g, 36, 12, 13, 56, 0x20000)
    srd(g, 44, 18, 19, WS_SIZE)
    srd(g, 48, 16, 17, 256)
    g("s_lshl_b32 s56, s2, 4")
    g("s_add_u32 s56, s56, s20")
    g("s_cmp_lg_u32 s56, 15")
    g("s_cbranch_scc1 L_nozero")
    for e in range(4):
        g(f"v_mov_b32 v{8+e}, 0")
    for k in range(32):
        if k % 4 == 0:
            g(f"s_mov_b32 s57, {k*1024}")
        off = f" offset:{(k&3)*1024}" if (k & 3) else ""
        g(f"buffer_store_dwordx4 v[8:11], v5, s[44:47], s57 offen{off} sc1")
    g("s_waitcnt vmcnt(0)")
    g("v_mov_b32 v9, 1")
    g("s_mov_b64 s[62:63], exec")
    g("s_mov_b64 exec, 1")
    g(f"buffer_atomic_add v9, v8, s[48:51], 0 offen offset:{D_ZFLAG}")
    g("s_mov_b64 exec, s[62:63]")
    g("s_waitcnt vmcnt(0)")
    g.label("L_nozero")
    g.issue("buffer_load_dwordx4 v[24:27], v5, s[40:43], 0 offen", "x")
    for i in range(8):
        g(f"s_mov_b32 s57, {i*32768}")
        g.issue(f"buffer_load_dwordx4 {vr(32+4*i,4)}, v6, s[32:35], s57 offen" + QNT, "wq")
    if QBAR:
        g("s_barrier")
    RING = 64
    def slot(n):
        return RING + 4 * (n % DEPTH)
    cur_soff = [None]
    def issue_stream(n):
        if n < 128:
            srdn = 24 if n < 64 else 28
            i = n % 64
            if ROT:
                g(f"s_add_u32 s58, s23, {i*1024}")
                g("s_and_b32 s58, s58, 0xffff")
                g.issue(f"buffer_load_dwordx4 {vr(slot(n),4)}, v4, {sr(srdn,4)}, s58 offen{nt}", ("s", n))
            else:
                so, imm = (i >> 2) * 4096, (i & 3) * 1024
                if so == 0:
                    sop = "0"
                else:
                    if cur_soff[0] != so:
                        g(f"s_mov_b32 s58, {so}")
                        cur_soff[0] = so
                    sop = "s58"
                off = f" offset:{imm}" if imm else ""
                g.issue(f"buffer_load_dwordx4 {vr(slot(n),4)}, v4, {sr(srdn,4)}, {sop} offen{off}{nt}", ("s", n))
        elif n < 136:
            j = n - 128
            if j == 0:
                g("s_lshl_b32 s59, s20, 13")
            if j == 4:
                g("s_add_u32 s59, s59, 4096")
            off = f" offset:{(j&3)*1024}" if (j & 3) else ""
            g.issue(f"buffer_load_dwordx4 {vr(32+4*j,4)}, v5, s[36:39], s59 offen{off}" + ONT, "wo")
    for n in range(DEPTH):
        issue_stream(n)
    g.wait_vm("x")
    X = list(range(16, 24))
    unpack8(g, 24, X)
    layernorm(g, X, 8, 24, 60, 61)
    g(f"ds_write_b128 v5, v[8:11] offset:{L_XN}")
    g("s_lshl_b32 s56, s20, 6")
    g("v_lshlrev_b32 v7, 1, v3")
    g("v_add_u32 v7, s56, v7")
    g("s_waitcnt lgkmcnt(0)")
    for i in range(8):
        g(f"ds_read_u16 v{16+i}, v7 offset:{L_XN + i*8}")
    for e in range(8):
        g(f"v_mov_b32 v{24+e}, 0")
    g("s_waitcnt lgkmcnt(0)")
    for i in range(8):
        g(f"v_lshlrev_b32 v{8+i}, 16, v{16+i}")
    g.wait_vm("wq")
    for i in range(8):
        for e in range(4):
            g(f"v_dot2c_f32_bf16 v{24+2*e}, v{16+i}, v{32+4*i+e}")
            g(f"v_dot2c_f32_bf16 v{25+2*e}, v{8+i}, v{32+4*i+e}")
    g.nop(3)
    xrow_allreduce(g, list(range(24, 32)), list(range(16, 24)))
    g("s_lshl_b32 s56, s20, 9")
    g("v_lshlrev_b32 v7, 5, v2")
    g("v_add_u32 v6, s56, v7")
    g(f"ds_write_b128 v6, v[24:27] offset:{L_QP}")
    g(f"ds_write_b128 v6, v[28:31] offset:{L_QP+16}")
    g("v_lshl_add_u32 v6, v3, 11, v7")
    g("s_waitcnt lgkmcnt(0)")
    g("s_barrier")
    for k in range(4):
        g(f"ds_read_b128 {vr(32+8*k,4)}, v6 offset:{L_QP + k*512}")
        g(f"ds_read_b128 {vr(36+8*k,4)}, v6 offset:{L_QP + k*512 + 16}")
    g("s_waitcnt lgkmcnt(0)")
    for e in range(8):
        g(f"v_add_f32 v{32+e}, v{32+e}, v{40+e}")
        g(f"v_add_f32 v{48+e}, v{48+e}, v{56+e}")
    for e in range(8):
        g(f"v_add_f32 v{32+e}, v{32+e}, v{48+e}")
    xrow_allreduce(g, list(range(32, 40)), list(range(40, 48)))
    for e in range(4):
        g(f"v_cvt_pk_bf16_f32 v{8+e}, v{32+2*e}, v{33+2*e}")
    for r in range(4):
        g(f"v_mov_b32 v{12+r}, 0")
    GR = 4
    for j in range(64 // GR):
        ns = list(range(j*GR, j*GR + GR))
        g.wait_vm([("s", n) for n in ns])
        for e in range(4):
            for u, n in enumerate(ns):
                c = "0" if e == 0 else f"v{16+u}"
                g(f"v_dot2_f32_bf16 v{16+u}, v{slot(n)+e}, v{8+e}, {c}")
        for n in ns:
            issue_stream(n + DEPTH)
        for lv in (8, 4, 2, 1):
            for u in range(GR):
                g(f"v_add_f32_dpp v{16+u}, v{16+u}, v{16+u} row_ror:{lv} {DPPM}")
        for u, n in enumerate(ns):
            i, r = n % 16, n // 16
            g(f"v_cndmask_b32_e64 v{12+r}, v{12+r}, v{16+u}, s[{64+2*i}:{65+2*i}]")
    for r in range(4):
        bf16r(g, 12+r, 12+r)
        g(f"v_mul_f32 v{12+r}, 0x3db504f3, v{12+r}")
        bf16r(g, 12+r, 12+r)
    g("v_max3_f32 v16, v12, v13, v14")
    g("v_max_f32 v16, v16, v15")
    allreduce_to_sgpr(g, 16, 60, op="max")
    g("v_mov_b32 v16, s60")
    g("s_lshl_b32 s56, s20, 2")
    g("v_mov_b32 v17, s56")
    g(f"ds_write_b32 v17, v16 offset:{L_MAX}")
    g("v_lshlrev_b32 v7, 2, v2")
    g("s_waitcnt lgkmcnt(0)")
    g("s_barrier")
    g(f"ds_read_b32 v16, v7 offset:{L_MAX}")
    g("s_waitcnt lgkmcnt(0)")
    row_allreduce(g, 16, op="max")
    for r in range(4):
        g(f"v_sub_f32 v{12+r}, v{12+r}, v16")
        g(f"v_mul_f32 v{12+r}, 0x3fb8aa3b, v{12+r}")
        g(f"v_exp_f32 v{12+r}, v{12+r}")
    g.nop(1)
    g("v_add_f32 v18, v12, v13")
    g("v_add_f32 v19, v14, v15")
    g("v_add_f32 v18, v18, v19")
    allreduce_to_sgpr(g, 18, 60)
    g("v_mov_b32 v18, s60")
    g(f"ds_write_b32 v17, v18 offset:{L_SUM}")
    g("s_waitcnt lgkmcnt(0)")
    g("s_barrier")
    g(f"ds_read_b32 v18, v7 offset:{L_SUM}")
    g("s_waitcnt lgkmcnt(0)")
    row_allreduce(g, 18)
    g.nop(1)
    g("v_readlane_b32 s60, v18, 0")
    g.nop(2)
    g("v_mov_b32 v18, s60")
    g("v_rcp_f32 v19, v18")
    g.nop(1)
    for r in range(4):
        g(f"v_mul_f32 v24, v{12+r}, v19")
        g(f"v_fma_f32 v25, -v24, v18, v{12+r}")
        g(f"v_fma_f32 v24, v25, v19, v24")
        g(f"v_cvt_pk_bf16_f32 v{20+r}, 0, v24")
        g(f"v_cvt_pk_bf16_f32 v{12+r}, v24, 0")
    PLO, PHI = 12, 20
    for e in range(8):
        g(f"v_mov_b32 v{24+e}, 0")
    g.nop(2)
    g.vm = [t for t in g.vm if t != "zf"]
    for j in range(64 // GR):
        ns = list(range(64 + j*GR, 64 + j*GR + GR))
        g.wait_vm([("s", n) for n in ns])
        for u, n in enumerate(ns):
            i, r = (n - 64) % 16, (n - 64) // 16
            for e in range(4):
                g(f"v_dot2c_f32_bf16_dpp v{24+2*e}, v{PLO+r}, v{slot(n)+e} row_newbcast:{i} {DPPM}")
                g(f"v_dot2c_f32_bf16_dpp v{25+2*e}, v{PHI+r}, v{slot(n)+e} row_newbcast:{i} {DPPM}")
            issue_stream(n + DEPTH)
    stamp(0)
    g.nop(3)
    xrow_allreduce(g, list(range(24, 32)), list(range(8, 16)))
    g("s_lshl_b32 s56, s20, 9")
    g("v_lshlrev_b32 v7, 5, v2")
    g("v_add_u32 v6, s56, v7")
    g(f"ds_write_b128 v6, v[24:27] offset:{L_OP}")
    g(f"ds_write_b128 v6, v[28:31] offset:{L_OP+16}")
    g("v_mov_b32 v10, 0")
    g.issue(f"buffer_load_dword v11, v10, s[48:51], 0 offen offset:{D_ZFLAG} sc1", "zfl")
    g("v_lshrrev_b32 v6, 3, v1")
    g("v_and_b32 v7, 7, v1")
    g("s_lshl_b32 s56, s20, 5")
    g("v_lshlrev_b32 v6, 9, v6")
    g("v_lshl_add_u32 v6, v7, 2, v6")
    g("v_add_u32 v6, s56, v6")
    g("s_waitcnt lgkmcnt(0)")
    g("s_barrier")
    g(f"ds_read_b32 v8, v6 offset:{L_OP}")
    g(f"ds_read_b32 v9, v6 offset:{L_OP+4096}")
    g("s_waitcnt lgkmcnt(0)")
    g("v_add_f32 v8, v8, v9")
    g.nop(2)
    g(f"v_add_f32_dpp v8, v8, v8 row_ror:8 {DPPM}")
    xrow_allreduce(g, [8], [9])
    bf16r(g, 8, 8)
    g.nop(1)
    for j in range(8):
        g(f"v_readlane_b32 s{72+j}, v8, {j}")
    g.nop(1)
    for j in range(8):
        g(f"s_lshr_b32 s{64+j}, s{72+j}, 16")
    for e in range(8):
        g(f"v_mov_b32 v{24+e}, 0")
    g.wait_all_vm()
    for j in range(8):
        for e in range(4):
            g(f"v_dot2c_f32_bf16 v{24+2*e}, s{64+j}, v{32+4*j+e}")
            g(f"v_dot2c_f32_bf16 v{25+2*e}, s{72+j}, v{32+4*j+e}")
    g("s_lshl_b32 s56, s20, 11")
    g("v_lshlrev_b32 v6, 5, v1")
    g("v_add_u32 v6, s56, v6")
    g.nop(2)
    g(f"ds_write_b128 v6, v[24:27] offset:{L_WP}")
    g(f"ds_write_b128 v6, v[28:31] offset:{L_WP+16}")
    g("v_and_b32 v6, 511, v0")
    g("v_lshlrev_b32 v6, 2, v6")
    g.label("L_zpoll")
    g("v_readfirstlane_b32 s56, v11")
    g("s_cmp_lg_u32 s56, 0")
    g("s_cbranch_scc1 L_zok")
    g("s_sleep 2")
    g(f"buffer_load_dword v11, v10, s[48:51], 0 offen offset:{D_ZFLAG} sc1")
    g("s_waitcnt vmcnt(0)")
    g("s_branch L_zpoll")
    g.label("L_zok")
    g("s_waitcnt lgkmcnt(0)")
    g("s_barrier")
    g("s_cmp_ge_u32 s20, 8")
    g("s_cbranch_scc1 L_skipred")
    for k in range(16):
        g(f"ds_read_b32 v{8+k}, v6 offset:{L_WP + k*2048}")
    g("s_waitcnt lgkmcnt(0)")
    for k in range(8):
        g(f"v_add_f32 v{8+k}, v{8+k}, v{16+k}")
    for k in range(4):
        g(f"v_add_f32 v{8+k}, v{8+k}, v{12+k}")
    g("v_add_f32 v8, v8, v9")
    g("v_add_f32 v10, v10, v11")
    g("v_add_f32 v8, v8, v10")
    g("s_lshl_b32 s56, s22, 11")
    g(f"s_add_u32 s56, s56, {WS_AACC}")
    g("buffer_atomic_add_f32 v8, v6, s[44:47], s56 offen")
    g.label("L_skipred")
    g("s_waitcnt vmcnt(0)")
    g("s_barrier")
    stamp(1)
    g("s_cmp_lg_u32 s20, 0")
    g("s_cbranch_scc1 L_tk")
    g("v_mov_b32 v8, 1")
    g("v_mov_b32 v10, 1")
    g("v_mov_b32 v9, 0")
    g("s_mov_b64 s[62:63], exec")
    g("s_mov_b64 exec, 1")
    g(f"buffer_atomic_add v10, v9, s[48:51], 0 offen offset:{D_ADONE}")
    g(f"buffer_atomic_add v8, v9, s[48:51], 0 offen offset:{D_TICKET} sc0")
    g("s_waitcnt vmcnt(0)")
    g(f"ds_write_b32 v9, v8 offset:{L_FLAG}")
    g("s_mov_b64 exec, s[62:63]")
    g("s_waitcnt lgkmcnt(0)")
    g.label("L_tk")
    g("s_barrier")
    g("v_mov_b32 v9, 0")
    g(f"ds_read_b32 v8, v9 offset:{L_FLAG}")
    g("s_waitcnt lgkmcnt(0)")
    g("v_readfirstlane_b32 s3, v8")
    g(f"s_cmp_ge_u32 s3, {NROLE}")
    g("s_cbranch_scc1 L_end")
    g("s_barrier")
    g.vm = []
    g("s_load_dwordx4 s[8:11], s[0:1], 48")
    g("s_load_dwordx4 s[12:15], s[0:1], 64")
    g("v_lshlrev_b32 v10, 4, v0")
    g("v_lshrrev_b32 v6, 2, v0")
    g("s_movk_i32 s57, 2752")
    g("v_mul_lo_u32 v6, v6, s57")
    g("v_and_b32 v7, 3, v0")
    g("s_lshl_b32 s56, s3, 6")
    g("v_lshl_add_u32 v6, v7, 4, v6")
    g("v_add_u32 v6, s56, v6")
    g(f"v_add_u32 v7, {M_GW}, v10")
    g(f"v_add_u32 v8, {M_UW}, v10")
    g(f"v_add_u32 v9, {M_DW}, v10")
    g("s_waitcnt lgkmcnt(0)")
    srd(g, 24, 8, 9, 1409024)
    srd(g, 52, 10, 11, 1409024)
    srd(g, 28, 12, 13, 1409024)
    srd(g, 32, 14, 15, 8192)
    srd(g, 36, 4, 5, 8192)
    g("s_mov_b32 s57, 704512")
    g("s_lshl_b32 s58, s3, 15")
    g("s_add_u32 s59, s58, 16384")
    g("buffer_load_dwordx4 v[16:19], v6, s[24:27], 0 offen " + FNT)
    g("buffer_load_dwordx4 v[20:23], v6, s[24:27], s57 offen " + FNT)
    g("buffer_load_dwordx4 v[24:27], v6, s[52:55], 0 offen " + FNT)
    g("buffer_load_dwordx4 v[28:31], v6, s[52:55], s57 offen " + FNT)
    g("buffer_load_dwordx4 v[32:35], v10, s[28:31], s58 offen " + FNT)
    g("buffer_load_dwordx4 v[36:39], v10, s[28:31], s59 offen " + FNT)
    g("buffer_load_dwordx4 v[12:15], v10, s[36:39], 0 offen")
    g("s_lshr_b32 s21, s20, 3")
    g("s_bfe_u32 s22, s20, 0x10002")
    g("s_and_b32 s23, s20, 3")
    g("v_lshrrev_b32 v2, 4, v1")
    g("v_bfe_u32 v3, v1, 2, 2")
    g("v_and_b32 v4, 3, v1")
    g("v_and_b32 v11, 7, v1")
    g("v_lshlrev_b32 v40, 10, v11")
    g("v_lshl_add_u32 v40, v2, 4, v40")
    g("s_lshl_b32 s56, s23, 8")
    g("v_add_u32 v40, s56, v40")
    g("v_lshl_add_u32 v41, v2, 3, v3")
    g("v_lshlrev_b32 v42, 6, v41")
    g("v_lshl_add_u32 v42, v4, 3, v42")
    g("s_lshl_b32 s56, s23, 13")
    g("s_lshl_b32 s57, s22, 5")
    g("s_add_u32 s56, s56, s57")
    g(f"s_mul_i32 s57, s21, {M_UW - M_GW}")
    g("s_add_u32 s56, s56, s57")
    g(f"s_add_u32 s56, s56, {M_GW}")
    g("v_add_u32 v42, s56, v42")
    g("v_lshlrev_b32 v43, 10, v41")
    g("v_lshl_add_u32 v43, v4, 3, v43")
    g("s_lshl_b32 s56, s20, 6")
    g(f"s_add_u32 s56, s56, {M_DW}")
    g("v_add_u32 v43, s56, v43")
    g("v_lshlrev_b32 v44, 6, v11")
    g("v_lshl_add_u32 v44, v2, 4, v44")
    g("v_and_b32 v45, 15, v1")
    g("v_lshlrev_b32 v46, 9, v2")
    g("v_lshl_add_u32 v46, v45, 2, v46")
    g("s_lshl_b32 s56, s23, 1")
    g("s_add_u32 s56, s56, s21")
    g("s_lshl_b32 s56, s56, 10")
    g("s_lshl_b32 s57, s22, 6")
    g("s_add_u32 s56, s56, s57")
    g("v_add_u32 v46, s56, v46")
    g("v_lshlrev_b32 v47, 13, v2")
    g("v_lshl_add_u32 v47, v45, 2, v47")
    g("s_lshl_b32 s56, s20, 7")
    g("v_add_u32 v47, s56, v47")
    g("s_waitcnt vmcnt(1)")
    g("ds_write_b128 v7, v[16:19]")
    g("ds_write_b128 v7, v[20:23] offset:16384")
    g("ds_write_b128 v8, v[24:27]")
    g("ds_write_b128 v8, v[28:31] offset:16384")
    g("ds_write_b128 v9, v[32:35]")
    g("ds_write_b128 v9, v[36:39] offset:16384")
    g("s_cmp_lg_u32 s20, 0")
    g("s_cbranch_scc1 L_polled")
    g("v_mov_b32 v16, 0")
    g.label("L_poll")
    g(f"buffer_load_dword v17, v16, s[48:51], 0 offen offset:{D_ADONE} sc1")
    g("s_waitcnt vmcnt(0)")
    g("v_readfirstlane_b32 s56, v17")
    g("s_cmp_ge_u32 s56, 256")
    g("s_cbranch_scc1 L_polled")
    g(f"s_sleep {SLEEP}")
    g("s_branch L_poll")
    g.label("L_polled")
    g("s_barrier")
    stamp(2)
    g("s_cmp_ge_u32 s20, 8")
    g("s_cbranch_scc1 L_noln")
    g("v_lshlrev_b32 v11, 5, v0")
    g(f"buffer_load_dwordx4 v[16:19], v11, s[44:47], 0 offen offset:{WS_AACC} sc1")
    g(f"buffer_load_dwordx4 v[20:23], v11, s[44:47], 0 offen offset:{WS_AACC+16} sc1")
    g("s_waitcnt vmcnt(0)")
    X = list(range(24, 32))
    unpack8(g, 12, X)
    for e in range(8):
        bf16r(g, 16+e, 16+e)
        g(f"v_add_f32 v{24+e}, v{24+e}, v{16+e}")
        bf16r(g, 24+e, 24+e)
    g(f"ds_write_b128 v11, v[24:27] offset:{M_H}")
    g(f"ds_write_b128 v11, v[28:31] offset:{M_H+16}")
    layernorm(g, X, 12, 32, 60, 61)
    g(f"ds_write_b128 v10, v[12:15] offset:{M_X}")
    g.label("L_noln")
    g("s_waitcnt vmcnt(0) lgkmcnt(0)")
    g("s_barrier")
    stamp(3)
    for st in range(4):
        g(f"ds_read_b128 {vr(48+4*st,4)}, v40 offset:{M_X + st*64}")
        g(f"ds_read_b64_tr_b16 {vr(64+4*st,2)}, v42 offset:{st*2048}")
        g(f"ds_read_b64_tr_b16 {vr(66+4*st,2)}, v42 offset:{st*2048+256}")
    for st in range(4):
        g(f"s_waitcnt lgkmcnt({9-3*st})")
        c = "0" if st == 0 else "v[80:83]"
        g(f"v_mfma_f32_16x16x32_bf16 v[80:83], {vr(48+4*st,4)}, {vr(64+4*st,4)}, {c}")
    g("s_nop 7")
    g("s_nop 3")
    g("s_mov_b32 exec_hi, 0")
    for r in range(4):
        g(f"ds_write_b32 v46, v{80+r} offset:{M_GU + r*128}")
    g("s_mov_b32 exec_hi, -1")
    g("v_lshlrev_b32 v12, 2, v0")
    g("s_waitcnt lgkmcnt(0)")
    g("s_barrier")
    stamp(4)
    g("s_cmp_ge_u32 s20, 4")
    g("s_cbranch_scc1 L_noact")
    for kq in range(4):
        g(f"ds_read_b32 v{16+kq}, v12 offset:{M_GU + kq*2048}")
        g(f"ds_read_b32 v{20+kq}, v12 offset:{M_GU + kq*2048 + 1024}")
    g("s_waitcnt lgkmcnt(0)")
    for base in (16, 20):
        g(f"v_add_f32 v{base}, v{base}, v{base+1}")
        g(f"v_add_f32 v{base+2}, v{base+2}, v{base+3}")
        g(f"v_add_f32 v{base}, v{base}, v{base+2}")
        bf16r(g, base, base)
    g("v_mul_f32 v17, 0xbfb8aa3b, v16")
    g("v_exp_f32 v17, v17")
    g.nop(1)
    g("v_add_f32 v17, 1.0, v17")
    g("v_rcp_f32 v18, v17")
    g.nop(1)
    g("v_mul_f32 v19, v16, v18")
    g("v_fma_f32 v21, -v19, v17, v16")
    g("v_fma_f32 v19, v21, v18, v19")
    g("v_mul_f32 v22, v16, v18")
    g("v_cmp_u_f32 vcc, v19, v19")
    g.nop(2)
    g("v_cndmask_b32 v19, v19, v22, vcc")
    bf16r(g, 19, 19)
    g("v_mul_f32 v19, v19, v20")
    g("v_cvt_pk_bf16_f32 v19, v19, v19")
    g("v_lshrrev_b32 v13, 1, v12")
    g(f"ds_write_b16 v13, v19 offset:{M_ACT}")
    g("s_waitcnt lgkmcnt(0)")
    g.label("L_noact")
    g("s_barrier")
    g(f"ds_read_b128 v[48:51], v44 offset:{M_ACT}")
    for i in range(2):
        g(f"ds_read_b64_tr_b16 {vr(64+4*i,2)}, v43 offset:{i*32}")
        g(f"ds_read_b64_tr_b16 {vr(66+4*i,2)}, v43 offset:{i*32+4096}")
    g("s_waitcnt lgkmcnt(0)")
    for i in range(2):
        g(f"v_mfma_f32_16x16x32_bf16 {vr(80+4*i,4)}, v[48:51], {vr(64+4*i,4)}, 0")
    g("s_nop 7")
    g("s_nop 3")
    g("s_mov_b32 exec_hi, 0")
    for i in range(2):
        for r in range(4):
            g(f"ds_write_b32 v47, v{80+4*i+r} offset:{M_DN + r*2048 + i*64}")
    g("s_mov_b32 exec_hi, -1")
    g("s_waitcnt lgkmcnt(0)")
    g("s_barrier")
    stamp(5)
    for j in range(4):
        g(f"ds_read_b32 v{16+j}, v12 offset:{M_DN + j*4096}")
    g(f"s_mov_b32 s56, {WS_OACC}")
    for j in range(4):
        g(f"s_waitcnt lgkmcnt({3-j})")
        if j:
            g("s_add_u32 s56, s56, 4096")
        g(f"buffer_atomic_add_f32 v{16+j}, v12, s[44:47], s56 offen")
    g("s_waitcnt vmcnt(0)")
    g("s_barrier")
    stamp(6)
    g("s_cmp_lg_u32 s20, 0")
    g("s_cbranch_scc1 L_wait_flag")
    g("v_mov_b32 v8, 1")
    g("v_mov_b32 v9, 0")
    g("s_mov_b64 s[62:63], exec")
    g("s_mov_b64 exec, 1")
    g(f"buffer_atomic_add v8, v9, s[48:51], 0 offen offset:{D_FDONE} sc0")
    g("s_waitcnt vmcnt(0)")
    g(f"ds_write_b32 v9, v8 offset:{M_FLAG}")
    g("s_mov_b64 exec, s[62:63]")
    g("s_waitcnt lgkmcnt(0)")
    g.label("L_wait_flag")
    g("s_barrier")
    g("v_mov_b32 v9, 0")
    g(f"ds_read_b32 v8, v9 offset:{M_FLAG}")
    g("s_waitcnt lgkmcnt(0)")
    g("v_readfirstlane_b32 s56, v8")
    g(f"s_cmp_lg_u32 s56, {NROLE-1}")
    g("s_cbranch_scc1 L_end")
    g(f"s_mov_b32 s56, {WS_OACC}")
    g("buffer_load_dwordx4 v[12:15], v10, s[44:47], s56 offen sc1")
    g(f"ds_read_b128 v[16:19], v10 offset:{M_H}")
    g("v_lshlrev_b32 v11, 3, v0")
    g("s_waitcnt vmcnt(0) lgkmcnt(0)")
    for e in range(4):
        bf16r(g, 12+e, 12+e)
        g(f"v_add_f32 v{12+e}, v{12+e}, v{16+e}")
    g("v_cvt_pk_bf16_f32 v20, v12, v13")
    g("v_cvt_pk_bf16_f32 v21, v14, v15")
    g("buffer_store_dwordx2 v[20:21], v11, s[32:35], 0 offen")
    stamp(7)
    g.label("L_end")
    g("s_endpgm")

def build(**kw):
    g = G(); gen(g, **kw)
    out = HEADER
    out += f"; @launch kernel={KNAME} grid=(256,1,1) block=(1024,1,1) lds={LDS_TOTAL}\n"
    out += '.amdgcn_target "amdgcn-amd-amdhsa--gfx950"\n.text\n'
    out += "\n".join(g.lines) + "\n"
    out += '.section .rodata,"a"\n.p2align 6\n'
    out += kd(KNAME, 128, 102)
    return out

if __name__ == "__main__":
    import argparse
    ap = argparse.ArgumentParser()
    ap.add_argument("-o", default="sequential_preLN__mha_block_cached__swiglu_ffn__decode.s")
    ap.add_argument("--stamp", action="store_true")
    ap.add_argument("--depth", type=int, default=16)
    ap.add_argument("--sleep", type=int, default=8)
    ap.add_argument("--qbar", action="store_true")
    ap.add_argument("--rot", default="5,4")
    ap.add_argument("--fnt", default="")
    ap.add_argument("--qnt", default="")
    ap.add_argument("--ont", default="")
    a = ap.parse_args()
    open(a.o, "w").write(build(STAMP=a.stamp, DEPTH=a.depth, SLEEP=a.sleep, QBAR=a.qbar, ROT=(tuple(int(x) for x in a.rot.split(',')) if a.rot != 'none' else None), FNT=a.fnt, QNT=(' '+a.qnt if a.qnt else ''), ONT=(' '+a.ont if a.ont else '')))
    print("wrote", a.o)
```

```python
import sys
from gen import G, DPPM, vr, sr, allreduce_to_sgpr, row_allreduce, bf16r, xrow_allreduce, layernorm, unpack8, srd, srd_off, kd, HEADER

KNAME = "sequential_preLN__mha_block_cached__swiglu_ffn__decode_kernel"
WS_AACC = 0x0
WS_OACC = 0x4000
WS_STAMP = 0x90000
WS_SIZE = 0x200000
D_ZFLAG = 128
D_ADONE = 0
D_TICKET = 64
D_FDONE = 192

L_XN = 0
L_QP = 1024
L_MAX = 9216
L_SUM = 9280
L_FLAG = 9344
L_OP = 10240
L_WP = 18432
M_X = 0
M_GU = 8192
M_ACT = 16384
M_FLAG = 16896
M_DN = 17408
M_H = 33792
M_GW = 50176
M_UW = 82944
M_DW = 115712
LDS_TOTAL = 148480
NROLE = 43

def gen(g, STAMP=False, DEPTH=16, SLEEP=8, QBAR=False, ROT=(5,4), FNT="", QNT="", ONT="", BLK=False):
    nt = " nt"
    def stamp(idx):
        if not STAMP: return
        g("s_memrealtime s[96:97]")
        g("s_waitcnt lgkmcnt(0)")
        g("v_mov_b32 v126, s96")
        g("v_mov_b32 v127, s97")
        g("s_lshl_b32 s98, s2, 7")
        g(f"s_add_u32 s98, s98, {WS_STAMP + idx*8}")
        g("s_lshl_b32 s99, s20, 15")
        g("s_add_u32 s98, s98, s99")
        g("v_mov_b32 v125, 0")
        g("buffer_store_dwordx2 v[126:127], v125, s[44:47], s98 offen")
        g.vm.append("stamp")
    g.raw(f".globl {KNAME}")
    g.raw(".p2align 8")
    g.raw(f".type {KNAME},@function")
    g.label(KNAME)
    g("s_cmp_ge_u32 s2, 256")
    g("s_cbranch_scc1 L_end")
    g("s_load_dwordx4 s[4:7], s[0:1], 0")
    g("s_load_dwordx4 s[8:11], s[0:1], 16")
    g("s_load_dwordx2 s[12:13], s[0:1], 32")
    g("s_load_dwordx4 s[16:19], s[0:1], 80")
    g("v_lshrrev_b32 v5, 6, v0")
    g("v_and_b32 v1, 63, v0")
    g("v_and_b32 v2, 15, v0")
    g("v_bfe_u32 v3, v0, 4, 2")
    g("v_readfirstlane_b32 s20, v5")
    g("s_and_b32 s21, s2, 31")
    g("s_lshr_b32 s22, s2, 5")
    g("s_mov_b32 s64, 0x00010001")
    g("s_mov_b32 s65, 0x00010001")
    for i in range(1, 16):
        g(f"s_lshl_b64 s[{64+2*i}:{65+2*i}], s[64:65], {i}")
    if ROT:
        g(f"s_mul_i32 s23, s2, {ROT[0]}")
        g(f"s_mul_i32 s56, s20, {ROT[1]}")
        g("s_add_u32 s23, s23, s56")
        g("s_lshl_b32 s23, s23, 10")
    g("v_lshlrev_b32 v5, 4, v1")
    g(f"s_lshl_b32 s56, s20, {14 if BLK else 16}")
    g("v_add_u32 v4, s56, v5")
    g("s_lshl_b32 s56, s20, 18")
    g("v_lshlrev_b32 v6, 13, v3")
    g("v_lshlrev_b32 v7, 4, v2")
    g("v_add3_u32 v6, v6, v7, s56")
    g("s_waitcnt lgkmcnt(0)")
    g("s_lshl_b32 s56, s22, 10")
    srd_off(g, 40, 4, 5, 56, 1024)
    g("s_lshl_b32 s56, s21, 8")
    g("s_sub_u32 s57, 0x400000, s56")
    g("s_add_u32 s32, s10, s56")
    g("s_addc_u32 s33, s11, 0")
    g("s_and_b32 s33, s33, 0xffff")
    g("s_mov_b32 s34, s57")
    g("s_mov_b32 s35, 0x00020000")
    g("s_lshl_b32 s56, s2, 20")
    srd_off(g, 24, 6, 7, 56, 0x100000)
    srd_off(g, 28, 8, 9, 56, 0x100000)
    g("s_lshl_b32 s56, s21, 17")
    srd_off(g, 36, 12, 13, 56, 0x20000)
    srd(g, 44, 18, 19, WS_SIZE)
    srd(g, 48, 16, 17, 256)
    g("s_lshl_b32 s56, s2, 4")
    g("s_add_u32 s56, s56, s20")
    g("s_cmp_lg_u32 s56, 15")
    g("s_cbranch_scc1 L_nozero")
    for e in range(4):
        g(f"v_mov_b32 v{8+e}, 0")
    for k in range(32):
        if k % 4 == 0:
            g(f"s_mov_b32 s57, {k*1024}")
        off = f" offset:{(k&3)*1024}" if (k & 3) else ""
        g(f"buffer_store_dwordx4 v[8:11], v5, s[44:47], s57 offen{off} sc1")
    g("s_waitcnt vmcnt(0)")
    g("v_mov_b32 v9, 1")
    g("s_mov_b64 s[62:63], exec")
    g("s_mov_b64 exec, 1")
    g(f"buffer_atomic_add v9, v8, s[48:51], 0 offen offset:{D_ZFLAG}")
    g("s_mov_b64 exec, s[62:63]")
    g("s_waitcnt vmcnt(0)")
    g.label("L_nozero")
    g.issue("buffer_load_dwordx4 v[24:27], v5, s[40:43], 0 offen", "x")
    for i in range(8):
        g(f"s_mov_b32 s57, {i*32768}")
        g.issue(f"buffer_load_dwordx4 {vr(32+4*i,4)}, v6, s[32:35], s57 offen" + QNT, "wq")
    if QBAR:
        g("s_barrier")
    RING = 64
    def slot(n):
        return RING + 4 * (n % DEPTH)
    cur_soff = [None]
    def issue_stream(n):
        if n < 128:
            srdn = 24 if n < 64 else 28
            i = n % 64
            if ROT:
                g(f"s_add_u32 s58, s23, {i*1024}")
                g("s_and_b32 s58, s58, 0xffff")
                if BLK:
                    g("s_and_b32 s59, s58, 0xc000")
                    g("s_lshl_b32 s59, s59, 4")
                    g("s_and_b32 s58, s58, 0x3fff")
                    g("s_or_b32 s58, s58, s59")
                g.issue(f"buffer_load_dwordx4 {vr(slot(n),4)}, v4, {sr(srdn,4)}, s58 offen{nt}", ("s", n))
            else:
                so, imm = (i >> 2) * 4096, (i & 3) * 1024
                if so == 0:
                    sop = "0"
                else:
                    if cur_soff[0] != so:
                        g(f"s_mov_b32 s58, {so}")
                        cur_soff[0] = so
                    sop = "s58"
                off = f" offset:{imm}" if imm else ""
                g.issue(f"buffer_load_dwordx4 {vr(slot(n),4)}, v4, {sr(srdn,4)}, {sop} offen{off}{nt}", ("s", n))
        elif n < 136:
            j = n - 128
            if j == 0:
                g("s_lshl_b32 s59, s20, 13")
            if j == 4:
                g("s_add_u32 s59, s59, 4096")
            off = f" offset:{(j&3)*1024}" if (j & 3) else ""
            g.issue(f"buffer_load_dwordx4 {vr(32+4*j,4)}, v5, s[36:39], s59 offen{off}" + ONT, "wo")
    for n in range(DEPTH):
        issue_stream(n)
    g.wait_vm("x")
    X = list(range(16, 24))
    unpack8(g, 24, X)
    layernorm(g, X, 8, 24, 60, 61)
    g(f"ds_write_b128 v5, v[8:11] offset:{L_XN}")
    g("s_lshl_b32 s56, s20, 6")
    g("v_lshlrev_b32 v7, 1, v3")
    g("v_add_u32 v7, s56, v7")
    g("s_waitcnt lgkmcnt(0)")
    for i in range(8):
        g(f"ds_read_u16 v{16+i}, v7 offset:{L_XN + i*8}")
    for e in range(8):
        g(f"v_mov_b32 v{24+e}, 0")
    g("s_waitcnt lgkmcnt(0)")
    for i in range(8):
        g(f"v_lshlrev_b32 v{8+i}, 16, v{16+i}")
    g.wait_vm("wq")
    for i in range(8):
        for e in range(4):
            g(f"v_dot2c_f32_bf16 v{24+2*e}, v{16+i}, v{32+4*i+e}")
            g(f"v_dot2c_f32_bf16 v{25+2*e}, v{8+i}, v{32+4*i+e}")
    g.nop(3)
    xrow_allreduce(g, list(range(24, 32)), list(range(16, 24)))
    g("s_lshl_b32 s56, s20, 9")
    g("v_lshlrev_b32 v7, 5, v2")
    g("v_add_u32 v6, s56, v7")
    g(f"ds_write_b128 v6, v[24:27] offset:{L_QP}")
    g(f"ds_write_b128 v6, v[28:31] offset:{L_QP+16}")
    g("v_lshl_add_u32 v6, v3, 11, v7")
    g("s_waitcnt lgkmcnt(0)")
    g("s_barrier")
    for k in range(4):
        g(f"ds_read_b128 {vr(32+8*k,4)}, v6 offset:{L_QP + k*512}")
        g(f"ds_read_b128 {vr(36+8*k,4)}, v6 offset:{L_QP + k*512 + 16}")
    g("s_waitcnt lgkmcnt(0)")
    for e in range(8):
        g(f"v_add_f32 v{32+e}, v{32+e}, v{40+e}")
        g(f"v_add_f32 v{48+e}, v{48+e}, v{56+e}")
    for e in range(8):
        g(f"v_add_f32 v{32+e}, v{32+e}, v{48+e}")
    xrow_allreduce(g, list(range(32, 40)), list(range(40, 48)))
    for e in range(4):
        g(f"v_cvt_pk_bf16_f32 v{8+e}, v{32+2*e}, v{33+2*e}")
    for r in range(4):
        g(f"v_mov_b32 v{12+r}, 0")
    GR = 4
    for j in range(64 // GR):
        ns = list(range(j*GR, j*GR + GR))
        g.wait_vm([("s", n) for n in ns])
        for e in range(4):
            for u, n in enumerate(ns):
                c = "0" if e == 0 else f"v{16+u}"
                g(f"v_dot2_f32_bf16 v{16+u}, v{slot(n)+e}, v{8+e}, {c}")
        for n in ns:
            issue_stream(n + DEPTH)
        for lv in (8, 4, 2, 1):
            for u in range(GR):
                g(f"v_add_f32_dpp v{16+u}, v{16+u}, v{16+u} row_ror:{lv} {DPPM}")
        for u, n in enumerate(ns):
            i, r = n % 16, n // 16
            g(f"v_cndmask_b32_e64 v{12+r}, v{12+r}, v{16+u}, s[{64+2*i}:{65+2*i}]")
    for r in range(4):
        bf16r(g, 12+r, 12+r)
        g(f"v_mul_f32 v{12+r}, 0x3db504f3, v{12+r}")
        bf16r(g, 12+r, 12+r)
    g("v_max3_f32 v16, v12, v13, v14")
    g("v_max_f32 v16, v16, v15")
    allreduce_to_sgpr(g, 16, 60, op="max")
    g("v_mov_b32 v16, s60")
    g("s_lshl_b32 s56, s20, 2")
    g("v_mov_b32 v17, s56")
    g(f"ds_write_b32 v17, v16 offset:{L_MAX}")
    g("v_lshlrev_b32 v7, 2, v2")
    g("s_waitcnt lgkmcnt(0)")
    g("s_barrier")
    g(f"ds_read_b32 v16, v7 offset:{L_MAX}")
    g("s_waitcnt lgkmcnt(0)")
    row_allreduce(g, 16, op="max")
    for r in range(4):
        g(f"v_sub_f32 v{12+r}, v{12+r}, v16")
        g(f"v_mul_f32 v{12+r}, 0x3fb8aa3b, v{12+r}")
        g(f"v_exp_f32 v{12+r}, v{12+r}")
    g.nop(1)
    g("v_add_f32 v18, v12, v13")
    g("v_add_f32 v19, v14, v15")
    g("v_add_f32 v18, v18, v19")
    allreduce_to_sgpr(g, 18, 60)
    g("v_mov_b32 v18, s60")
    g(f"ds_write_b32 v17, v18 offset:{L_SUM}")
    g("s_waitcnt lgkmcnt(0)")
    g("s_barrier")
    g(f"ds_read_b32 v18, v7 offset:{L_SUM}")
    g("s_waitcnt lgkmcnt(0)")
    row_allreduce(g, 18)
    g.nop(1)
    g("v_readlane_b32 s60, v18, 0")
    g.nop(2)
    g("v_mov_b32 v18, s60")
    g("v_rcp_f32 v19, v18")
    g.nop(1)
    for r in range(4):
        g(f"v_mul_f32 v24, v{12+r}, v19")
        g(f"v_fma_f32 v25, -v24, v18, v{12+r}")
        g(f"v_fma_f32 v24, v25, v19, v24")
        g(f"v_cvt_pk_bf16_f32 v{20+r}, 0, v24")
        g(f"v_cvt_pk_bf16_f32 v{12+r}, v24, 0")
    PLO, PHI = 12, 20
    for e in range(8):
        g(f"v_mov_b32 v{24+e}, 0")
    g.nop(2)
    g.vm = [t for t in g.vm if t != "zf"]
    for j in range(64 // GR):
        ns = list(range(64 + j*GR, 64 + j*GR + GR))
        g.wait_vm([("s", n) for n in ns])
        for u, n in enumerate(ns):
            i, r = (n - 64) % 16, (n - 64) // 16
            for e in range(4):
                g(f"v_dot2c_f32_bf16_dpp v{24+2*e}, v{PLO+r}, v{slot(n)+e} row_newbcast:{i} {DPPM}")
                g(f"v_dot2c_f32_bf16_dpp v{25+2*e}, v{PHI+r}, v{slot(n)+e} row_newbcast:{i} {DPPM}")
            issue_stream(n + DEPTH)
    stamp(0)
    g.nop(3)
    xrow_allreduce(g, list(range(24, 32)), list(range(8, 16)))
    g("s_lshl_b32 s56, s20, 9")
    g("v_lshlrev_b32 v7, 5, v2")
    g("v_add_u32 v6, s56, v7")
    g(f"ds_write_b128 v6, v[24:27] offset:{L_OP}")
    g(f"ds_write_b128 v6, v[28:31] offset:{L_OP+16}")
    g("v_mov_b32 v10, 0")
    g.issue(f"buffer_load_dword v11, v10, s[48:51], 0 offen offset:{D_ZFLAG} sc1", "zfl")
    g("v_lshrrev_b32 v6, 3, v1")
    g("v_and_b32 v7, 7, v1")
    g("s_lshl_b32 s56, s20, 5")
    g("v_lshlrev_b32 v6, 9, v6")
    g("v_lshl_add_u32 v6, v7, 2, v6")
    g("v_add_u32 v6, s56, v6")
    g("s_waitcnt lgkmcnt(0)")
    g("s_barrier")
    g(f"ds_read_b32 v8, v6 offset:{L_OP}")
    g(f"ds_read_b32 v9, v6 offset:{L_OP+4096}")
    g("s_waitcnt lgkmcnt(0)")
    g("v_add_f32 v8, v8, v9")
    g.nop(2)
    g(f"v_add_f32_dpp v8, v8, v8 row_ror:8 {DPPM}")
    xrow_allreduce(g, [8], [9])
    bf16r(g, 8, 8)
    g.nop(1)
    for j in range(8):
        g(f"v_readlane_b32 s{72+j}, v8, {j}")
    g.nop(1)
    for j in range(8):
        g(f"s_lshr_b32 s{64+j}, s{72+j}, 16")
    for e in range(8):
        g(f"v_mov_b32 v{24+e}, 0")
    g.wait_all_vm()
    for j in range(8):
        for e in range(4):
            g(f"v_dot2c_f32_bf16 v{24+2*e}, s{64+j}, v{32+4*j+e}")
            g(f"v_dot2c_f32_bf16 v{25+2*e}, s{72+j}, v{32+4*j+e}")
    g("s_lshl_b32 s56, s20, 11")
    g("v_lshlrev_b32 v6, 5, v1")
    g("v_add_u32 v6, s56, v6")
    g.nop(2)
    g(f"ds_write_b128 v6, v[24:27] offset:{L_WP}")
    g(f"ds_write_b128 v6, v[28:31] offset:{L_WP+16}")
    g("v_and_b32 v6, 511, v0")
    g("v_lshlrev_b32 v6, 2, v6")
    g.label("L_zpoll")
    g("v_readfirstlane_b32 s56, v11")
    g("s_cmp_lg_u32 s56, 0")
    g("s_cbranch_scc1 L_zok")
    g("s_sleep 2")
    g(f"buffer_load_dword v11, v10, s[48:51], 0 offen offset:{D_ZFLAG} sc1")
    g("s_waitcnt vmcnt(0)")
    g("s_branch L_zpoll")
    g.label("L_zok")
    g("s_waitcnt lgkmcnt(0)")
    g("s_barrier")
    g("s_cmp_ge_u32 s20, 8")
    g("s_cbranch_scc1 L_skipred")
    for k in range(16):
        g(f"ds_read_b32 v{8+k}, v6 offset:{L_WP + k*2048}")
    g("s_waitcnt lgkmcnt(0)")
    for k in range(8):
        g(f"v_add_f32 v{8+k}, v{8+k}, v{16+k}")
    for k in range(4):
        g(f"v_add_f32 v{8+k}, v{8+k}, v{12+k}")
    g("v_add_f32 v8, v8, v9")
    g("v_add_f32 v10, v10, v11")
    g("v_add_f32 v8, v8, v10")
    g("s_lshl_b32 s56, s22, 11")
    g(f"s_add_u32 s56, s56, {WS_AACC}")
    g("buffer_atomic_add_f32 v8, v6, s[44:47], s56 offen")
    g.label("L_skipred")
    g("s_waitcnt vmcnt(0)")
    g("s_barrier")
    stamp(1)
    g("s_cmp_lg_u32 s20, 0")
    g("s_cbranch_scc1 L_tk")
    g("v_mov_b32 v8, 1")
    g("v_mov_b32 v10, 1")
    g("v_mov_b32 v9, 0")
    g("s_mov_b64 s[62:63], exec")
    g("s_mov_b64 exec, 1")
    g(f"buffer_atomic_add v10, v9, s[48:51], 0 offen offset:{D_ADONE}")
    g(f"buffer_atomic_add v8, v9, s[48:51], 0 offen offset:{D_TICKET} sc0")
    g("s_waitcnt vmcnt(0)")
    g(f"ds_write_b32 v9, v8 offset:{L_FLAG}")
    g("s_mov_b64 exec, s[62:63]")
    g("s_waitcnt lgkmcnt(0)")
    g.label("L_tk")
    g("s_barrier")
    g("v_mov_b32 v9, 0")
    g(f"ds_read_b32 v8, v9 offset:{L_FLAG}")
    g("s_waitcnt lgkmcnt(0)")
    g("v_readfirstlane_b32 s3, v8")
    g(f"s_cmp_ge_u32 s3, {NROLE}")
    g("s_cbranch_scc1 L_end")
    g("s_barrier")
    g.vm = []
    g("s_load_dwordx4 s[8:11], s[0:1], 48")
    g("s_load_dwordx4 s[12:15], s[0:1], 64")
    g("v_lshlrev_b32 v10, 4, v0")
    g("v_lshrrev_b32 v6, 2, v0")
    g("s_movk_i32 s57, 2752")
    g("v_mul_lo_u32 v6, v6, s57")
    g("v_and_b32 v7, 3, v0")
    g("s_lshl_b32 s56, s3, 6")
    g("v_lshl_add_u32 v6, v7, 4, v6")
    g("v_add_u32 v6, s56, v6")
    g(f"v_add_u32 v7, {M_GW}, v10")
    g(f"v_add_u32 v8, {M_UW}, v10")
    g(f"v_add_u32 v9, {M_DW}, v10")
    g("s_waitcnt lgkmcnt(0)")
    srd(g, 24, 8, 9, 1409024)
    srd(g, 52, 10, 11, 1409024)
    srd(g, 28, 12, 13, 1409024)
    srd(g, 32, 14, 15, 8192)
    srd(g, 36, 4, 5, 8192)
    g("s_mov_b32 s57, 704512")
    g("s_lshl_b32 s58, s3, 15")
    g("s_add_u32 s59, s58, 16384")
    g("buffer_load_dwordx4 v[16:19], v6, s[24:27], 0 offen " + FNT)
    g("buffer_load_dwordx4 v[20:23], v6, s[24:27], s57 offen " + FNT)
    g("buffer_load_dwordx4 v[24:27], v6, s[52:55], 0 offen " + FNT)
    g("buffer_load_dwordx4 v[28:31], v6, s[52:55], s57 offen " + FNT)
    g("buffer_load_dwordx4 v[32:35], v10, s[28:31], s58 offen " + FNT)
    g("buffer_load_dwordx4 v[36:39], v10, s[28:31], s59 offen " + FNT)
    g("buffer_load_dwordx4 v[12:15], v10, s[36:39], 0 offen")
    g("s_lshr_b32 s21, s20, 3")
    g("s_bfe_u32 s22, s20, 0x10002")
    g("s_and_b32 s23, s20, 3")
    g("v_lshrrev_b32 v2, 4, v1")
    g("v_bfe_u32 v3, v1, 2, 2")
    g("v_and_b32 v4, 3, v1")
    g("v_and_b32 v11, 7, v1")
    g("v_lshlrev_b32 v40, 10, v11")
    g("v_lshl_add_u32 v40, v2, 4, v40")
    g("s_lshl_b32 s56, s23, 8")
    g("v_add_u32 v40, s56, v40")
    g("v_lshl_add_u32 v41, v2, 3, v3")
    g("v_lshlrev_b32 v42, 6, v41")
    g("v_lshl_add_u32 v42, v4, 3, v42")
    g("s_lshl_b32 s56, s23, 13")
    g("s_lshl_b32 s57, s22, 5")
    g("s_add_u32 s56, s56, s57")
    g(f"s_mul_i32 s57, s21, {M_UW - M_GW}")
    g("s_add_u32 s56, s56, s57")
    g(f"s_add_u32 s56, s56, {M_GW}")
    g("v_add_u32 v42, s56, v42")
    g("v_lshlrev_b32 v43, 10, v41")
    g("v_lshl_add_u32 v43, v4, 3, v43")
    g("s_lshl_b32 s56, s20, 6")
    g(f"s_add_u32 s56, s56, {M_DW}")
    g("v_add_u32 v43, s56, v43")
    g("v_lshlrev_b32 v44, 6, v11")
    g("v_lshl_add_u32 v44, v2, 4, v44")
    g("v_and_b32 v45, 15, v1")
    g("v_lshlrev_b32 v46, 9, v2")
    g("v_lshl_add_u32 v46, v45, 2, v46")
    g("s_lshl_b32 s56, s23, 1")
    g("s_add_u32 s56, s56, s21")
    g("s_lshl_b32 s56, s56, 10")
    g("s_lshl_b32 s57, s22, 6")
    g("s_add_u32 s56, s56, s57")
    g("v_add_u32 v46, s56, v46")
    g("v_lshlrev_b32 v47, 13, v2")
    g("v_lshl_add_u32 v47, v45, 2, v47")
    g("s_lshl_b32 s56, s20, 7")
    g("v_add_u32 v47, s56, v47")
    g("s_waitcnt vmcnt(1)")
    g("ds_write_b128 v7, v[16:19]")
    g("ds_write_b128 v7, v[20:23] offset:16384")
    g("ds_write_b128 v8, v[24:27]")
    g("ds_write_b128 v8, v[28:31] offset:16384")
    g("ds_write_b128 v9, v[32:35]")
    g("ds_write_b128 v9, v[36:39] offset:16384")
    g("s_cmp_lg_u32 s20, 0")
    g("s_cbranch_scc1 L_polled")
    g("v_mov_b32 v16, 0")
    g.label("L_poll")
    g(f"buffer_load_dword v17, v16, s[48:51], 0 offen offset:{D_ADONE} sc1")
    g("s_waitcnt vmcnt(0)")
    g("v_readfirstlane_b32 s56, v17")
    g("s_cmp_ge_u32 s56, 256")
    g("s_cbranch_scc1 L_polled")
    g(f"s_sleep {SLEEP}")
    g("s_branch L_poll")
    g.label("L_polled")
    g("s_barrier")
    stamp(2)
    g("s_cmp_ge_u32 s20, 8")
    g("s_cbranch_scc1 L_noln")
    g("v_lshlrev_b32 v11, 5, v0")
    g(f"buffer_load_dwordx4 v[16:19], v11, s[44:47], 0 offen offset:{WS_AACC} sc1")
    g(f"buffer_load_dwordx4 v[20:23], v11, s[44:47], 0 offen offset:{WS_AACC+16} sc1")
    g("s_waitcnt vmcnt(0)")
    X = list(range(24, 32))
    unpack8(g, 12, X)
    for e in range(8):
        bf16r(g, 16+e, 16+e)
        g(f"v_add_f32 v{24+e}, v{24+e}, v{16+e}")
        bf16r(g, 24+e, 24+e)
    g(f"ds_write_b128 v11, v[24:27] offset:{M_H}")
    g(f"ds_write_b128 v11, v[28:31] offset:{M_H+16}")
    layernorm(g, X, 12, 32, 60, 61)
    g(f"ds_write_b128 v10, v[12:15] offset:{M_X}")
    g.label("L_noln")
    g("s_waitcnt vmcnt(0) lgkmcnt(0)")
    g("s_barrier")
    stamp(3)
    for st in range(4):
        g(f"ds_read_b128 {vr(48+4*st,4)}, v40 offset:{M_X + st*64}")
        g(f"ds_read_b64_tr_b16 {vr(64+4*st,2)}, v42 offset:{st*2048}")
        g(f"ds_read_b64_tr_b16 {vr(66+4*st,2)}, v42 offset:{st*2048+256}")
    for st in range(4):
        g(f"s_waitcnt lgkmcnt({9-3*st})")
        c = "0" if st == 0 else "v[80:83]"
        g(f"v_mfma_f32_16x16x32_bf16 v[80:83], {vr(48+4*st,4)}, {vr(64+4*st,4)}, {c}")
    g("s_nop 7")
    g("s_nop 3")
    g("s_mov_b32 exec_hi, 0")
    for r in range(4):
        g(f"ds_write_b32 v46, v{80+r} offset:{M_GU + r*128}")
    g("s_mov_b32 exec_hi, -1")
    g("v_lshlrev_b32 v12, 2, v0")
    g("s_waitcnt lgkmcnt(0)")
    g("s_barrier")
    stamp(4)
    g("s_cmp_ge_u32 s20, 4")
    g("s_cbranch_scc1 L_noact")
    for kq in range(4):
        g(f"ds_read_b32 v{16+kq}, v12 offset:{M_GU + kq*2048}")
        g(f"ds_read_b32 v{20+kq}, v12 offset:{M_GU + kq*2048 + 1024}")
    g("s_waitcnt lgkmcnt(0)")
    for base in (16, 20):
        g(f"v_add_f32 v{base}, v{base}, v{base+1}")
        g(f"v_add_f32 v{base+2}, v{base+2}, v{base+3}")
        g(f"v_add_f32 v{base}, v{base}, v{base+2}")
        bf16r(g, base, base)
    g("v_mul_f32 v17, 0xbfb8aa3b, v16")
    g("v_exp_f32 v17, v17")
    g.nop(1)
    g("v_add_f32 v17, 1.0, v17")
    g("v_rcp_f32 v18, v17")
    g.nop(1)
    g("v_mul_f32 v19, v16, v18")
    g("v_fma_f32 v21, -v19, v17, v16")
    g("v_fma_f32 v19, v21, v18, v19")
    g("v_mul_f32 v22, v16, v18")
    g("v_cmp_u_f32 vcc, v19, v19")
    g.nop(2)
    g("v_cndmask_b32 v19, v19, v22, vcc")
    bf16r(g, 19, 19)
    g("v_mul_f32 v19, v19, v20")
    g("v_cvt_pk_bf16_f32 v19, v19, v19")
    g("v_lshrrev_b32 v13, 1, v12")
    g(f"ds_write_b16 v13, v19 offset:{M_ACT}")
    g("s_waitcnt lgkmcnt(0)")
    g.label("L_noact")
    g("s_barrier")
    g(f"ds_read_b128 v[48:51], v44 offset:{M_ACT}")
    for i in range(2):
        g(f"ds_read_b64_tr_b16 {vr(64+4*i,2)}, v43 offset:{i*32}")
        g(f"ds_read_b64_tr_b16 {vr(66+4*i,2)}, v43 offset:{i*32+4096}")
    g("s_waitcnt lgkmcnt(0)")
    for i in range(2):
        g(f"v_mfma_f32_16x16x32_bf16 {vr(80+4*i,4)}, v[48:51], {vr(64+4*i,4)}, 0")
    g("s_nop 7")
    g("s_nop 3")
    g("s_mov_b32 exec_hi, 0")
    for i in range(2):
        for r in range(4):
            g(f"ds_write_b32 v47, v{80+4*i+r} offset:{M_DN + r*2048 + i*64}")
    g("s_mov_b32 exec_hi, -1")
    g("s_waitcnt lgkmcnt(0)")
    g("s_barrier")
    stamp(5)
    for j in range(4):
        g(f"ds_read_b32 v{16+j}, v12 offset:{M_DN + j*4096}")
    g(f"s_mov_b32 s56, {WS_OACC}")
    for j in range(4):
        g(f"s_waitcnt lgkmcnt({3-j})")
        if j:
            g("s_add_u32 s56, s56, 4096")
        g(f"buffer_atomic_add_f32 v{16+j}, v12, s[44:47], s56 offen")
    g("s_waitcnt vmcnt(0)")
    g("s_barrier")
    stamp(6)
    g("s_cmp_lg_u32 s20, 0")
    g("s_cbranch_scc1 L_wait_flag")
    g("v_mov_b32 v8, 1")
    g("v_mov_b32 v9, 0")
    g("s_mov_b64 s[62:63], exec")
    g("s_mov_b64 exec, 1")
    g(f"buffer_atomic_add v8, v9, s[48:51], 0 offen offset:{D_FDONE} sc0")
    g("s_waitcnt vmcnt(0)")
    g(f"ds_write_b32 v9, v8 offset:{M_FLAG}")
    g("s_mov_b64 exec, s[62:63]")
    g("s_waitcnt lgkmcnt(0)")
    g.label("L_wait_flag")
    g("s_barrier")
    g("v_mov_b32 v9, 0")
    g(f"ds_read_b32 v8, v9 offset:{M_FLAG}")
    g("s_waitcnt lgkmcnt(0)")
    g("v_readfirstlane_b32 s56, v8")
    g(f"s_cmp_lg_u32 s56, {NROLE-1}")
    g("s_cbranch_scc1 L_end")
    g(f"s_mov_b32 s56, {WS_OACC}")
    g("buffer_load_dwordx4 v[12:15], v10, s[44:47], s56 offen sc1")
    g(f"ds_read_b128 v[16:19], v10 offset:{M_H}")
    g("v_lshlrev_b32 v11, 3, v0")
    g("s_waitcnt vmcnt(0) lgkmcnt(0)")
    for e in range(4):
        bf16r(g, 12+e, 12+e)
        g(f"v_add_f32 v{12+e}, v{12+e}, v{16+e}")
    g("v_cvt_pk_bf16_f32 v20, v12, v13")
    g("v_cvt_pk_bf16_f32 v21, v14, v15")
    g("buffer_store_dwordx2 v[20:21], v11, s[32:35], 0 offen")
    stamp(7)
    g.label("L_end")
    g("s_endpgm")

def build(**kw):
    g = G(); gen(g, **kw)
    out = HEADER
    out += f"; @launch kernel={KNAME} grid=(256,1,1) block=(1024,1,1) lds={LDS_TOTAL}\n"
    out += '.amdgcn_target "amdgcn-amd-amdhsa--gfx950"\n.text\n'
    out += "\n".join(g.lines) + "\n"
    out += '.section .rodata,"a"\n.p2align 6\n'
    out += kd(KNAME, 128, 102)
    return out

if __name__ == "__main__":
    import argparse
    ap = argparse.ArgumentParser()
    ap.add_argument("-o", default="sequential_preLN__mha_block_cached__swiglu_ffn__decode.s")
    ap.add_argument("--stamp", action="store_true")
    ap.add_argument("--depth", type=int, default=16)
    ap.add_argument("--sleep", type=int, default=8)
    ap.add_argument("--qbar", action="store_true")
    ap.add_argument("--rot", default="5,4")
    ap.add_argument("--fnt", default="")
    ap.add_argument("--qnt", default="")
    ap.add_argument("--ont", default="")
    ap.add_argument("--blk", action="store_true")
    a = ap.parse_args()
    open(a.o, "w").write(build(STAMP=a.stamp, DEPTH=a.depth, SLEEP=a.sleep, QBAR=a.qbar, ROT=(tuple(int(x) for x in a.rot.split(',')) if a.rot != 'none' else None), FNT=a.fnt, QNT=(' '+a.qnt if a.qnt else ''), ONT=(' '+a.ont if a.ont else ''), BLK=a.blk))
    print("wrote", a.o)
```

```python
import sys
from gen import G, DPPM, vr, sr, allreduce_to_sgpr, row_allreduce, bf16r, xrow_allreduce, layernorm, unpack8, srd, srd_off, kd, HEADER

KNAME = "sequential_preLN__mha_block_cached__swiglu_ffn__decode_kernel"
WS_AACC = 0x0
WS_OACC = 0x4000
WS_STAMP = 0x90000
WS_SIZE = 0x200000
D_ZFLAG = 128
D_ADONE = 0
D_TICKET = 64
D_FDONE = 192

L_XN = 0
L_QP = 1024
L_MAX = 9216
L_SUM = 9280
L_FLAG = 9344
L_OP = 10240
L_WP = 18432
M_X = 0
M_GU = 8192
M_ACT = 16384
M_FLAG = 16896
M_DN = 17408
M_H = 33792
M_GW = 50176
M_UW = 82944
M_DW = 115712
LDS_TOTAL = 148480
NROLE = 43

def gen(g, STAMP=False, DEPTH=16, SLEEP=8, QBAR=False, ROT=(5,4), FNT="", QNT="", ONT="", BLK=False, EARLYWO=True):
    nt = " nt"
    def stamp(idx):
        if not STAMP: return
        g("s_memrealtime s[96:97]")
        g("s_waitcnt lgkmcnt(0)")
        g("v_mov_b32 v126, s96")
        g("v_mov_b32 v127, s97")
        g("s_lshl_b32 s98, s2, 7")
        g(f"s_add_u32 s98, s98, {WS_STAMP + idx*8}")
        g("s_lshl_b32 s99, s20, 15")
        g("s_add_u32 s98, s98, s99")
        g("v_mov_b32 v125, 0")
        g("buffer_store_dwordx2 v[126:127], v125, s[44:47], s98 offen")
        g.vm.append("stamp")
    g.raw(f".globl {KNAME}")
    g.raw(".p2align 8")
    g.raw(f".type {KNAME},@function")
    g.label(KNAME)
    g("s_cmp_ge_u32 s2, 256")
    g("s_cbranch_scc1 L_end")
    g("s_load_dwordx4 s[4:7], s[0:1], 0")
    g("s_load_dwordx4 s[8:11], s[0:1], 16")
    g("s_load_dwordx2 s[12:13], s[0:1], 32")
    g("s_load_dwordx4 s[16:19], s[0:1], 80")
    g("v_lshrrev_b32 v5, 6, v0")
    g("v_and_b32 v1, 63, v0")
    g("v_and_b32 v2, 15, v0")
    g("v_bfe_u32 v3, v0, 4, 2")
    g("v_readfirstlane_b32 s20, v5")
    g("s_and_b32 s21, s2, 31")
    g("s_lshr_b32 s22, s2, 5")
    g("s_mov_b32 s64, 0x00010001")
    g("s_mov_b32 s65, 0x00010001")
    for i in range(1, 16):
        g(f"s_lshl_b64 s[{64+2*i}:{65+2*i}], s[64:65], {i}")
    if ROT:
        g(f"s_mul_i32 s23, s2, {ROT[0]}")
        g(f"s_mul_i32 s56, s20, {ROT[1]}")
        g("s_add_u32 s23, s23, s56")
        g("s_lshl_b32 s23, s23, 10")
    g("v_lshlrev_b32 v5, 4, v1")
    g(f"s_lshl_b32 s56, s20, {14 if BLK else 16}")
    g("v_add_u32 v4, s56, v5")
    g("s_lshl_b32 s56, s20, 18")
    g("v_lshlrev_b32 v6, 13, v3")
    g("v_lshlrev_b32 v7, 4, v2")
    g("v_add3_u32 v6, v6, v7, s56")
    g("s_waitcnt lgkmcnt(0)")
    g("s_lshl_b32 s56, s22, 10")
    srd_off(g, 40, 4, 5, 56, 1024)
    g("s_lshl_b32 s56, s21, 8")
    g("s_sub_u32 s57, 0x400000, s56")
    g("s_add_u32 s32, s10, s56")
    g("s_addc_u32 s33, s11, 0")
    g("s_and_b32 s33, s33, 0xffff")
    g("s_mov_b32 s34, s57")
    g("s_mov_b32 s35, 0x00020000")
    g("s_lshl_b32 s56, s2, 20")
    srd_off(g, 24, 6, 7, 56, 0x100000)
    srd_off(g, 28, 8, 9, 56, 0x100000)
    g("s_lshl_b32 s56, s21, 17")
    srd_off(g, 36, 12, 13, 56, 0x20000)
    srd(g, 44, 18, 19, WS_SIZE)
    srd(g, 48, 16, 17, 256)
    g("s_lshl_b32 s56, s2, 4")
    g("s_add_u32 s56, s56, s20")
    g("s_cmp_lg_u32 s56, 15")
    g("s_cbranch_scc1 L_nozero")
    for e in range(4):
        g(f"v_mov_b32 v{8+e}, 0")
    for k in range(32):
        if k % 4 == 0:
            g(f"s_mov_b32 s57, {k*1024}")
        off = f" offset:{(k&3)*1024}" if (k & 3) else ""
        g(f"buffer_store_dwordx4 v[8:11], v5, s[44:47], s57 offen{off} sc1")
    g("s_waitcnt vmcnt(0)")
    g("v_mov_b32 v9, 1")
    g("s_mov_b64 s[62:63], exec")
    g("s_mov_b64 exec, 1")
    g(f"buffer_atomic_add v9, v8, s[48:51], 0 offen offset:{D_ZFLAG}")
    g("s_mov_b64 exec, s[62:63]")
    g("s_waitcnt vmcnt(0)")
    g.label("L_nozero")
    g.issue("buffer_load_dwordx4 v[24:27], v5, s[40:43], 0 offen", "x")
    for i in range(8):
        g(f"s_mov_b32 s57, {i*32768}")
        g.issue(f"buffer_load_dwordx4 {vr(32+4*i,4)}, v6, s[32:35], s57 offen" + QNT, "wq")
    if QBAR:
        g("s_barrier")
    RING = 64
    def slot(n):
        return RING + 4 * (n % DEPTH)
    cur_soff = [None]
    def issue_stream(n):
        if n < 128:
            srdn = 24 if n < 64 else 28
            i = n % 64
            if ROT:
                g(f"s_add_u32 s58, s23, {i*1024}")
                g("s_and_b32 s58, s58, 0xffff")
                if BLK:
                    g("s_and_b32 s59, s58, 0xc000")
                    g("s_lshl_b32 s59, s59, 4")
                    g("s_and_b32 s58, s58, 0x3fff")
                    g("s_or_b32 s58, s58, s59")
                g.issue(f"buffer_load_dwordx4 {vr(slot(n),4)}, v4, {sr(srdn,4)}, s58 offen{nt}", ("s", n))
            else:
                so, imm = (i >> 2) * 4096, (i & 3) * 1024
                if so == 0:
                    sop = "0"
                else:
                    if cur_soff[0] != so:
                        g(f"s_mov_b32 s58, {so}")
                        cur_soff[0] = so
                    sop = "s58"
                off = f" offset:{imm}" if imm else ""
                g.issue(f"buffer_load_dwordx4 {vr(slot(n),4)}, v4, {sr(srdn,4)}, {sop} offen{off}{nt}", ("s", n))
        elif n < 136:
            j = n - 128
            if j == 0:
                g("s_lshl_b32 s59, s20, 13")
            if j == 4:
                g("s_add_u32 s59, s59, 4096")
            off = f" offset:{(j&3)*1024}" if (j & 3) else ""
            g.issue(f"buffer_load_dwordx4 {vr(32+4*j,4)}, v5, s[36:39], s59 offen{off}" + ONT, "wo")
    for n in range(DEPTH):
        issue_stream(n)
    g.wait_vm("x")
    X = list(range(16, 24))
    unpack8(g, 24, X)
    layernorm(g, X, 8, 24, 60, 61)
    g(f"ds_write_b128 v5, v[8:11] offset:{L_XN}")
    g("s_lshl_b32 s56, s20, 6")
    g("v_lshlrev_b32 v7, 1, v3")
    g("v_add_u32 v7, s56, v7")
    g("s_waitcnt lgkmcnt(0)")
    for i in range(8):
        g(f"ds_read_u16 v{16+i}, v7 offset:{L_XN + i*8}")
    for e in range(8):
        g(f"v_mov_b32 v{24+e}, 0")
    g("s_waitcnt lgkmcnt(0)")
    for i in range(8):
        g(f"v_lshlrev_b32 v{8+i}, 16, v{16+i}")
    g.wait_vm("wq")
    for i in range(8):
        for e in range(4):
            g(f"v_dot2c_f32_bf16 v{24+2*e}, v{16+i}, v{32+4*i+e}")
            g(f"v_dot2c_f32_bf16 v{25+2*e}, v{8+i}, v{32+4*i+e}")
    g.nop(3)
    xrow_allreduce(g, list(range(24, 32)), list(range(16, 24)))
    g("s_lshl_b32 s56, s20, 9")
    g("v_lshlrev_b32 v7, 5, v2")
    g("v_add_u32 v6, s56, v7")
    g(f"ds_write_b128 v6, v[24:27] offset:{L_QP}")
    g(f"ds_write_b128 v6, v[28:31] offset:{L_QP+16}")
    g("v_lshl_add_u32 v6, v3, 11, v7")
    g("s_waitcnt lgkmcnt(0)")
    g("s_barrier")
    for k in range(4):
        g(f"ds_read_b128 {vr(32+8*k,4)}, v6 offset:{L_QP + k*512}")
        g(f"ds_read_b128 {vr(36+8*k,4)}, v6 offset:{L_QP + k*512 + 16}")
    g("s_waitcnt lgkmcnt(0)")
    for e in range(8):
        g(f"v_add_f32 v{32+e}, v{32+e}, v{40+e}")
        g(f"v_add_f32 v{48+e}, v{48+e}, v{56+e}")
    for e in range(8):
        g(f"v_add_f32 v{32+e}, v{32+e}, v{48+e}")
    xrow_allreduce(g, list(range(32, 40)), list(range(40, 48)))
    for e in range(4):
        g(f"v_cvt_pk_bf16_f32 v{8+e}, v{32+2*e}, v{33+2*e}")
    for r in range(4):
        g(f"v_mov_b32 v{12+r}, 0")
    if EARLYWO:
        for n in range(128, 136):
            issue_stream(n)
    GR = 4
    for j in range(64 // GR):
        ns = list(range(j*GR, j*GR + GR))
        g.wait_vm([("s", n) for n in ns])
        for e in range(4):
            for u, n in enumerate(ns):
                c = "0" if e == 0 else f"v{16+u}"
                g(f"v_dot2_f32_bf16 v{16+u}, v{slot(n)+e}, v{8+e}, {c}")
        for n in ns:
            issue_stream(n + DEPTH)
        for lv in (8, 4, 2, 1):
            for u in range(GR):
                g(f"v_add_f32_dpp v{16+u}, v{16+u}, v{16+u} row_ror:{lv} {DPPM}")
        for u, n in enumerate(ns):
            i, r = n % 16, n // 16
            g(f"v_cndmask_b32_e64 v{12+r}, v{12+r}, v{16+u}, s[{64+2*i}:{65+2*i}]")
    for r in range(4):
        bf16r(g, 12+r, 12+r)
        g(f"v_mul_f32 v{12+r}, 0x3db504f3, v{12+r}")
        bf16r(g, 12+r, 12+r)
    g("v_max3_f32 v16, v12, v13, v14")
    g("v_max_f32 v16, v16, v15")
    allreduce_to_sgpr(g, 16, 60, op="max")
    g("v_mov_b32 v16, s60")
    g("s_lshl_b32 s56, s20, 2")
    g("v_mov_b32 v17, s56")
    g(f"ds_write_b32 v17, v16 offset:{L_MAX}")
    g("v_lshlrev_b32 v7, 2, v2")
    g("s_waitcnt lgkmcnt(0)")
    g("s_barrier")
    g(f"ds_read_b32 v16, v7 offset:{L_MAX}")
    g("s_waitcnt lgkmcnt(0)")
    row_allreduce(g, 16, op="max")
    for r in range(4):
        g(f"v_sub_f32 v{12+r}, v{12+r}, v16")
        g(f"v_mul_f32 v{12+r}, 0x3fb8aa3b, v{12+r}")
        g(f"v_exp_f32 v{12+r}, v{12+r}")
    g.nop(1)
    g("v_add_f32 v18, v12, v13")
    g("v_add_f32 v19, v14, v15")
    g("v_add_f32 v18, v18, v19")
    allreduce_to_sgpr(g, 18, 60)
    g("v_mov_b32 v18, s60")
    g(f"ds_write_b32 v17, v18 offset:{L_SUM}")
    g("s_waitcnt lgkmcnt(0)")
    g("s_barrier")
    g(f"ds_read_b32 v18, v7 offset:{L_SUM}")
    g("s_waitcnt lgkmcnt(0)")
    row_allreduce(g, 18)
    g.nop(1)
    g("v_readlane_b32 s60, v18, 0")
    g.nop(2)
    g("v_mov_b32 v18, s60")
    g("v_rcp_f32 v19, v18")
    g.nop(1)
    for r in range(4):
        g(f"v_mul_f32 v24, v{12+r}, v19")
        g(f"v_fma_f32 v25, -v24, v18, v{12+r}")
        g(f"v_fma_f32 v24, v25, v19, v24")
        g(f"v_cvt_pk_bf16_f32 v{20+r}, 0, v24")
        g(f"v_cvt_pk_bf16_f32 v{12+r}, v24, 0")
    PLO, PHI = 12, 20
    for e in range(8):
        g(f"v_mov_b32 v{24+e}, 0")
    g.nop(2)
    g.vm = [t for t in g.vm if t != "zf"]
    for j in range(64 // GR):
        ns = list(range(64 + j*GR, 64 + j*GR + GR))
        g.wait_vm([("s", n) for n in ns])
        for u, n in enumerate(ns):
            i, r = (n - 64) % 16, (n - 64) // 16
            for e in range(4):
                g(f"v_dot2c_f32_bf16_dpp v{24+2*e}, v{PLO+r}, v{slot(n)+e} row_newbcast:{i} {DPPM}")
                g(f"v_dot2c_f32_bf16_dpp v{25+2*e}, v{PHI+r}, v{slot(n)+e} row_newbcast:{i} {DPPM}")
            if not (EARLYWO and n + DEPTH >= 128):
                issue_stream(n + DEPTH)
    stamp(0)
    g.nop(3)
    xrow_allreduce(g, list(range(24, 32)), list(range(8, 16)))
    g("s_lshl_b32 s56, s20, 9")
    g("v_lshlrev_b32 v7, 5, v2")
    g("v_add_u32 v6, s56, v7")
    g(f"ds_write_b128 v6, v[24:27] offset:{L_OP}")
    g(f"ds_write_b128 v6, v[28:31] offset:{L_OP+16}")
    g("v_mov_b32 v10, 0")
    g.issue(f"buffer_load_dword v11, v10, s[48:51], 0 offen offset:{D_ZFLAG} sc1", "zfl")
    g("v_lshrrev_b32 v6, 3, v1")
    g("v_and_b32 v7, 7, v1")
    g("s_lshl_b32 s56, s20, 5")
    g("v_lshlrev_b32 v6, 9, v6")
    g("v_lshl_add_u32 v6, v7, 2, v6")
    g("v_add_u32 v6, s56, v6")
    g("s_waitcnt lgkmcnt(0)")
    g("s_barrier")
    g(f"ds_read_b32 v8, v6 offset:{L_OP}")
    g(f"ds_read_b32 v9, v6 offset:{L_OP+4096}")
    g("s_waitcnt lgkmcnt(0)")
    g("v_add_f32 v8, v8, v9")
    g.nop(2)
    g(f"v_add_f32_dpp v8, v8, v8 row_ror:8 {DPPM}")
    xrow_allreduce(g, [8], [9])
    bf16r(g, 8, 8)
    g.nop(1)
    for j in range(8):
        g(f"v_readlane_b32 s{72+j}, v8, {j}")
    g.nop(1)
    for j in range(8):
        g(f"s_lshr_b32 s{64+j}, s{72+j}, 16")
    for e in range(8):
        g(f"v_mov_b32 v{24+e}, 0")
    g.wait_all_vm()
    for j in range(8):
        for e in range(4):
            g(f"v_dot2c_f32_bf16 v{24+2*e}, s{64+j}, v{32+4*j+e}")
            g(f"v_dot2c_f32_bf16 v{25+2*e}, s{72+j}, v{32+4*j+e}")
    g("s_lshl_b32 s56, s20, 11")
    g("v_lshlrev_b32 v6, 5, v1")
    g("v_add_u32 v6, s56, v6")
    g.nop(2)
    g(f"ds_write_b128 v6, v[24:27] offset:{L_WP}")
    g(f"ds_write_b128 v6, v[28:31] offset:{L_WP+16}")
    g("v_and_b32 v6, 511, v0")
    g("v_lshlrev_b32 v6, 2, v6")
    g.label("L_zpoll")
    g("v_readfirstlane_b32 s56, v11")
    g("s_cmp_lg_u32 s56, 0")
    g("s_cbranch_scc1 L_zok")
    g("s_sleep 2")
    g(f"buffer_load_dword v11, v10, s[48:51], 0 offen offset:{D_ZFLAG} sc1")
    g("s_waitcnt vmcnt(0)")
    g("s_branch L_zpoll")
    g.label("L_zok")
    g("s_waitcnt lgkmcnt(0)")
    g("s_barrier")
    g("s_cmp_ge_u32 s20, 8")
    g("s_cbranch_scc1 L_skipred")
    for k in range(16):
        g(f"ds_read_b32 v{8+k}, v6 offset:{L_WP + k*2048}")
    g("s_waitcnt lgkmcnt(0)")
    for k in range(8):
        g(f"v_add_f32 v{8+k}, v{8+k}, v{16+k}")
    for k in range(4):
        g(f"v_add_f32 v{8+k}, v{8+k}, v{12+k}")
    g("v_add_f32 v8, v8, v9")
    g("v_add_f32 v10, v10, v11")
    g("v_add_f32 v8, v8, v10")
    g("s_lshl_b32 s56, s22, 11")
    g(f"s_add_u32 s56, s56, {WS_AACC}")
    g("buffer_atomic_add_f32 v8, v6, s[44:47], s56 offen")
    g.label("L_skipred")
    g("s_waitcnt vmcnt(0)")
    g("s_barrier")
    stamp(1)
    g("s_cmp_lg_u32 s20, 0")
    g("s_cbranch_scc1 L_tk")
    g("v_mov_b32 v8, 1")
    g("v_mov_b32 v10, 1")
    g("v_mov_b32 v9, 0")
    g("s_mov_b64 s[62:63], exec")
    g("s_mov_b64 exec, 1")
    g(f"buffer_atomic_add v10, v9, s[48:51], 0 offen offset:{D_ADONE}")
    g(f"buffer_atomic_add v8, v9, s[48:51], 0 offen offset:{D_TICKET} sc0")
    g("s_waitcnt vmcnt(0)")
    g(f"ds_write_b32 v9, v8 offset:{L_FLAG}")
    g("s_mov_b64 exec, s[62:63]")
    g("s_waitcnt lgkmcnt(0)")
    g.label("L_tk")
    g("s_barrier")
    g("v_mov_b32 v9, 0")
    g(f"ds_read_b32 v8, v9 offset:{L_FLAG}")
    g("s_waitcnt lgkmcnt(0)")
    g("v_readfirstlane_b32 s3, v8")
    g(f"s_cmp_ge_u32 s3, {NROLE}")
    g("s_cbranch_scc1 L_end")
    g("s_barrier")
    g.vm = []
    g("s_load_dwordx4 s[8:11], s[0:1], 48")
    g("s_load_dwordx4 s[12:15], s[0:1], 64")
    g("v_lshlrev_b32 v10, 4, v0")
    g("v_lshrrev_b32 v6, 2, v0")
    g("s_movk_i32 s57, 2752")
    g("v_mul_lo_u32 v6, v6, s57")
    g("v_and_b32 v7, 3, v0")
    g("s_lshl_b32 s56, s3, 6")
    g("v_lshl_add_u32 v6, v7, 4, v6")
    g("v_add_u32 v6, s56, v6")
    g(f"v_add_u32 v7, {M_GW}, v10")
    g(f"v_add_u32 v8, {M_UW}, v10")
    g(f"v_add_u32 v9, {M_DW}, v10")
    g("s_waitcnt lgkmcnt(0)")
    srd(g, 24, 8, 9, 1409024)
    srd(g, 52, 10, 11, 1409024)
    srd(g, 28, 12, 13, 1409024)
    srd(g, 32, 14, 15, 8192)
    srd(g, 36, 4, 5, 8192)
    g("s_mov_b32 s57, 704512")
    g("s_lshl_b32 s58, s3, 15")
    g("s_add_u32 s59, s58, 16384")
    g("buffer_load_dwordx4 v[16:19], v6, s[24:27], 0 offen " + FNT)
    g("buffer_load_dwordx4 v[20:23], v6, s[24:27], s57 offen " + FNT)
    g("buffer_load_dwordx4 v[24:27], v6, s[52:55], 0 offen " + FNT)
    g("buffer_load_dwordx4 v[28:31], v6, s[52:55], s57 offen " + FNT)
    g("buffer_load_dwordx4 v[32:35], v10, s[28:31], s58 offen " + FNT)
    g("buffer_load_dwordx4 v[36:39], v10, s[28:31], s59 offen " + FNT)
    g("buffer_load_dwordx4 v[12:15], v10, s[36:39], 0 offen")
    g("s_lshr_b32 s21, s20, 3")
    g("s_bfe_u32 s22, s20, 0x10002")
    g("s_and_b32 s23, s20, 3")
    g("v_lshrrev_b32 v2, 4, v1")
    g("v_bfe_u32 v3, v1, 2, 2")
    g("v_and_b32 v4, 3, v1")
    g("v_and_b32 v11, 7, v1")
    g("v_lshlrev_b32 v40, 10, v11")
    g("v_lshl_add_u32 v40, v2, 4, v40")
    g("s_lshl_b32 s56, s23, 8")
    g("v_add_u32 v40, s56, v40")
    g("v_lshl_add_u32 v41, v2, 3, v3")
    g("v_lshlrev_b32 v42, 6, v41")
    g("v_lshl_add_u32 v42, v4, 3, v42")
    g("s_lshl_b32 s56, s23, 13")
    g("s_lshl_b32 s57, s22, 5")
    g("s_add_u32 s56, s56, s57")
    g(f"s_mul_i32 s57, s21, {M_UW - M_GW}")
    g("s_add_u32 s56, s56, s57")
    g(f"s_add_u32 s56, s56, {M_GW}")
    g("v_add_u32 v42, s56, v42")
    g("v_lshlrev_b32 v43, 10, v41")
    g("v_lshl_add_u32 v43, v4, 3, v43")
    g("s_lshl_b32 s56, s20, 6")
    g(f"s_add_u32 s56, s56, {M_DW}")
    g("v_add_u32 v43, s56, v43")
    g("v_lshlrev_b32 v44, 6, v11")
    g("v_lshl_add_u32 v44, v2, 4, v44")
    g("v_and_b32 v45, 15, v1")
    g("v_lshlrev_b32 v46, 9, v2")
    g("v_lshl_add_u32 v46, v45, 2, v46")
    g("s_lshl_b32 s56, s23, 1")
    g("s_add_u32 s56, s56, s21")
    g("s_lshl_b32 s56, s56, 10")
    g("s_lshl_b32 s57, s22, 6")
    g("s_add_u32 s56, s56, s57")
    g("v_add_u32 v46, s56, v46")
    g("v_lshlrev_b32 v47, 13, v2")
    g("v_lshl_add_u32 v47, v45, 2, v47")
    g("s_lshl_b32 s56, s20, 7")
    g("v_add_u32 v47, s56, v47")
    g("s_waitcnt vmcnt(1)")
    g("ds_write_b128 v7, v[16:19]")
    g("ds_write_b128 v7, v[20:23] offset:16384")
    g("ds_write_b128 v8, v[24:27]")
    g("ds_write_b128 v8, v[28:31] offset:16384")
    g("ds_write_b128 v9, v[32:35]")
    g("ds_write_b128 v9, v[36:39] offset:16384")
    g("s_cmp_lg_u32 s20, 0")
    g("s_cbranch_scc1 L_polled")
    g("v_mov_b32 v16, 0")
    g.label("L_poll")
    g(f"buffer_load_dword v17, v16, s[48:51], 0 offen offset:{D_ADONE} sc1")
    g("s_waitcnt vmcnt(0)")
    g("v_readfirstlane_b32 s56, v17")
    g("s_cmp_ge_u32 s56, 256")
    g("s_cbranch_scc1 L_polled")
    g(f"s_sleep {SLEEP}")
    g("s_branch L_poll")
    g.label("L_polled")
    g("s_barrier")
    stamp(2)
    g("s_cmp_ge_u32 s20, 8")
    g("s_cbranch_scc1 L_noln")
    g("v_lshlrev_b32 v11, 5, v0")
    g(f"buffer_load_dwordx4 v[16:19], v11, s[44:47], 0 offen offset:{WS_AACC} sc1")
    g(f"buffer_load_dwordx4 v[20:23], v11, s[44:47], 0 offen offset:{WS_AACC+16} sc1")
    g("s_waitcnt vmcnt(0)")
    X = list(range(24, 32))
    unpack8(g, 12, X)
    for e in range(8):
        bf16r(g, 16+e, 16+e)
        g(f"v_add_f32 v{24+e}, v{24+e}, v{16+e}")
        bf16r(g, 24+e, 24+e)
    g(f"ds_write_b128 v11, v[24:27] offset:{M_H}")
    g(f"ds_write_b128 v11, v[28:31] offset:{M_H+16}")
    layernorm(g, X, 12, 32, 60, 61)
    g(f"ds_write_b128 v10, v[12:15] offset:{M_X}")
    g.label("L_noln")
    g("s_waitcnt vmcnt(0) lgkmcnt(0)")
    g("s_barrier")
    stamp(3)
    for st in range(4):
        g(f"ds_read_b128 {vr(48+4*st,4)}, v40 offset:{M_X + st*64}")
        g(f"ds_read_b64_tr_b16 {vr(64+4*st,2)}, v42 offset:{st*2048}")
        g(f"ds_read_b64_tr_b16 {vr(66+4*st,2)}, v42 offset:{st*2048+256}")
    for st in range(4):
        g(f"s_waitcnt lgkmcnt({9-3*st})")
        c = "0" if st == 0 else "v[80:83]"
        g(f"v_mfma_f32_16x16x32_bf16 v[80:83], {vr(48+4*st,4)}, {vr(64+4*st,4)}, {c}")
    g("s_nop 7")
    g("s_nop 3")
    g("s_mov_b32 exec_hi, 0")
    for r in range(4):
        g(f"ds_write_b32 v46, v{80+r} offset:{M_GU + r*128}")
    g("s_mov_b32 exec_hi, -1")
    g("v_lshlrev_b32 v12, 2, v0")
    g("s_waitcnt lgkmcnt(0)")
    g("s_barrier")
    stamp(4)
    g("s_cmp_ge_u32 s20, 4")
    g("s_cbranch_scc1 L_noact")
    for kq in range(4):
        g(f"ds_read_b32 v{16+kq}, v12 offset:{M_GU + kq*2048}")
        g(f"ds_read_b32 v{20+kq}, v12 offset:{M_GU + kq*2048 + 1024}")
    g("s_waitcnt lgkmcnt(0)")
    for base in (16, 20):
        g(f"v_add_f32 v{base}, v{base}, v{base+1}")
        g(f"v_add_f32 v{base+2}, v{base+2}, v{base+3}")
        g(f"v_add_f32 v{base}, v{base}, v{base+2}")
        bf16r(g, base, base)
    g("v_mul_f32 v17, 0xbfb8aa3b, v16")
    g("v_exp_f32 v17, v17")
    g.nop(1)
    g("v_add_f32 v17, 1.0, v17")
    g("v_rcp_f32 v18, v17")
    g.nop(1)
    g("v_mul_f32 v19, v16, v18")
    g("v_fma_f32 v21, -v19, v17, v16")
    g("v_fma_f32 v19, v21, v18, v19")
    g("v_mul_f32 v22, v16, v18")
    g("v_cmp_u_f32 vcc, v19, v19")
    g.nop(2)
    g("v_cndmask_b32 v19, v19, v22, vcc")
    bf16r(g, 19, 19)
    g("v_mul_f32 v19, v19, v20")
    g("v_cvt_pk_bf16_f32 v19, v19, v19")
    g("v_lshrrev_b32 v13, 1, v12")
    g(f"ds_write_b16 v13, v19 offset:{M_ACT}")
    g("s_waitcnt lgkmcnt(0)")
    g.label("L_noact")
    g("s_barrier")
    g(f"ds_read_b128 v[48:51], v44 offset:{M_ACT}")
    for i in range(2):
        g(f"ds_read_b64_tr_b16 {vr(64+4*i,2)}, v43 offset:{i*32}")
        g(f"ds_read_b64_tr_b16 {vr(66+4*i,2)}, v43 offset:{i*32+4096}")
    g("s_waitcnt lgkmcnt(0)")
    for i in range(2):
        g(f"v_mfma_f32_16x16x32_bf16 {vr(80+4*i,4)}, v[48:51], {vr(64+4*i,4)}, 0")
    g("s_nop 7")
    g("s_nop 3")
    g("s_mov_b32 exec_hi, 0")
    for i in range(2):
        for r in range(4):
            g(f"ds_write_b32 v47, v{80+4*i+r} offset:{M_DN + r*2048 + i*64}")
    g("s_mov_b32 exec_hi, -1")
    g("s_waitcnt lgkmcnt(0)")
    g("s_barrier")
    stamp(5)
    for j in range(4):
        g(f"ds_read_b32 v{16+j}, v12 offset:{M_DN + j*4096}")
    g(f"s_mov_b32 s56, {WS_OACC}")
    for j in range(4):
        g(f"s_waitcnt lgkmcnt({3-j})")
        if j:
            g("s_add_u32 s56, s56, 4096")
        g(f"buffer_atomic_add_f32 v{16+j}, v12, s[44:47], s56 offen")
    g("s_waitcnt vmcnt(0)")
    g("s_barrier")
    stamp(6)
    g("s_cmp_lg_u32 s20, 0")
    g("s_cbranch_scc1 L_wait_flag")
    g("v_mov_b32 v8, 1")
    g("v_mov_b32 v9, 0")
    g("s_mov_b64 s[62:63], exec")
    g("s_mov_b64 exec, 1")
    g(f"buffer_atomic_add v8, v9, s[48:51], 0 offen offset:{D_FDONE} sc0")
    g("s_waitcnt vmcnt(0)")
    g(f"ds_write_b32 v9, v8 offset:{M_FLAG}")
    g("s_mov_b64 exec, s[62:63]")
    g("s_waitcnt lgkmcnt(0)")
    g.label("L_wait_flag")
    g("s_barrier")
    g("v_mov_b32 v9, 0")
    g(f"ds_read_b32 v8, v9 offset:{M_FLAG}")
    g("s_waitcnt lgkmcnt(0)")
    g("v_readfirstlane_b32 s56, v8")
    g(f"s_cmp_lg_u32 s56, {NROLE-1}")
    g("s_cbranch_scc1 L_end")
    g(f"s_mov_b32 s56, {WS_OACC}")
    g("buffer_load_dwordx4 v[12:15], v10, s[44:47], s56 offen sc1")
    g(f"ds_read_b128 v[16:19], v10 offset:{M_H}")
    g("v_lshlrev_b32 v11, 3, v0")
    g("s_waitcnt vmcnt(0) lgkmcnt(0)")
    for e in range(4):
        bf16r(g, 12+e, 12+e)
        g(f"v_add_f32 v{12+e}, v{12+e}, v{16+e}")
    g("v_cvt_pk_bf16_f32 v20, v12, v13")
    g("v_cvt_pk_bf16_f32 v21, v14, v15")
    g("buffer_store_dwordx2 v[20:21], v11, s[32:35], 0 offen")
    stamp(7)
    g.label("L_end")
    g("s_endpgm")

def build(**kw):
    g = G(); gen(g, **kw)
    out = HEADER
    out += f"; @launch kernel={KNAME} grid=(256,1,1) block=(1024,1,1) lds={LDS_TOTAL}\n"
    out += '.amdgcn_target "amdgcn-amd-amdhsa--gfx950"\n.text\n'
    out += "\n".join(g.lines) + "\n"
    out += '.section .rodata,"a"\n.p2align 6\n'
    out += kd(KNAME, 128, 102)
    return out

if __name__ == "__main__":
    import argparse
    ap = argparse.ArgumentParser()
    ap.add_argument("-o", default="sequential_preLN__mha_block_cached__swiglu_ffn__decode.s")
    ap.add_argument("--stamp", action="store_true")
    ap.add_argument("--depth", type=int, default=16)
    ap.add_argument("--sleep", type=int, default=8)
    ap.add_argument("--qbar", action="store_true")
    ap.add_argument("--rot", default="5,4")
    ap.add_argument("--fnt", default="")
    ap.add_argument("--qnt", default="")
    ap.add_argument("--ont", default="")
    ap.add_argument("--blk", action="store_true")
    ap.add_argument("--latewo", action="store_true")
    a = ap.parse_args()
    open(a.o, "w").write(build(STAMP=a.stamp, DEPTH=a.depth, SLEEP=a.sleep, QBAR=a.qbar, ROT=(tuple(int(x) for x in a.rot.split(',')) if a.rot != 'none' else None), FNT=a.fnt, QNT=(' '+a.qnt if a.qnt else ''), ONT=(' '+a.ont if a.ont else ''), BLK=a.blk, EARLYWO=not a.latewo))
    print("wrote", a.o)
```

```python
import sys
from gen import G, DPPM, vr, sr, allreduce_to_sgpr, row_allreduce, bf16r, xrow_allreduce, layernorm, unpack8, srd, srd_off, kd, HEADER

KNAME = "sequential_preLN__mha_block_cached__swiglu_ffn__decode_kernel"
WS_AACC = 0x0
WS_OACC = 0x4000
WS_STAMP = 0x90000
WS_SIZE = 0x200000
D_ZFLAG = 128
D_ADONE = 0
D_TICKET = 64
D_FDONE = 192

L_XN = 0
L_QP = 1024
L_MAX = 9216
L_SUM = 9280
L_FLAG = 9344
L_OP = 10240
L_WP = 18432
L_CNT = 9352
L_P = 51200
M_X = 0
M_GU = 8192
M_ACT = 16384
M_FLAG = 16896
M_DN = 17408
M_H = 33792
M_GW = 50176
M_UW = 82944
M_DW = 115712
LDS_TOTAL = 148480
NROLE = 43

def gen(g, STAMP=False, DEPTH=16, SLEEP=8, QBAR=False, ROT=(5,4), FNT="", QNT="", ONT="", BLK=False, EARLYWO=True, DYNV=False, ROT2=1):
    nt = " nt"
    def stamp(idx):
        if not STAMP: return
        g("s_memrealtime s[96:97]")
        g("s_waitcnt lgkmcnt(0)")
        g("v_mov_b32 v126, s96")
        g("v_mov_b32 v127, s97")
        g("s_lshl_b32 s98, s2, 7")
        g(f"s_add_u32 s98, s98, {WS_STAMP + idx*8}")
        g("s_lshl_b32 s99, s20, 15")
        g("s_add_u32 s98, s98, s99")
        g("v_mov_b32 v125, 0")
        g("buffer_store_dwordx2 v[126:127], v125, s[44:47], s98 offen")
        g.vm.append("stamp")
    g.raw(f".globl {KNAME}")
    g.raw(".p2align 8")
    g.raw(f".type {KNAME},@function")
    g.label(KNAME)
    g("s_cmp_ge_u32 s2, 256")
    g("s_cbranch_scc1 L_end")
    g("s_load_dwordx4 s[4:7], s[0:1], 0")
    g("s_load_dwordx4 s[8:11], s[0:1], 16")
    g("s_load_dwordx2 s[12:13], s[0:1], 32")
    g("s_load_dwordx4 s[16:19], s[0:1], 80")
    g("v_lshrrev_b32 v5, 6, v0")
    g("v_and_b32 v1, 63, v0")
    g("v_and_b32 v2, 15, v0")
    g("v_bfe_u32 v3, v0, 4, 2")
    g("v_readfirstlane_b32 s20, v5")
    g("s_and_b32 s21, s2, 31")
    g("s_lshr_b32 s22, s2, 5")
    g("s_mov_b32 s64, 0x00010001")
    g("s_mov_b32 s65, 0x00010001")
    for i in range(1, 16):
        g(f"s_lshl_b64 s[{64+2*i}:{65+2*i}], s[64:65], {i}")
    if ROT:
        g(f"s_mul_i32 s23, s2, {ROT[0]}")
        g(f"s_mul_i32 s56, s20, {ROT[1]}")
        g("s_add_u32 s23, s23, s56")
        g("s_lshl_b32 s23, s23, 10")
    g("v_lshlrev_b32 v5, 4, v1")
    g(f"s_lshl_b32 s56, s20, {14 if BLK else 16}")
    g("v_add_u32 v4, s56, v5")
    g("s_lshl_b32 s56, s20, 18")
    g("v_lshlrev_b32 v6, 13, v3")
    g("v_lshlrev_b32 v7, 4, v2")
    g("v_add3_u32 v6, v6, v7, s56")
    g("s_waitcnt lgkmcnt(0)")
    g("s_lshl_b32 s56, s22, 10")
    srd_off(g, 40, 4, 5, 56, 1024)
    g("s_lshl_b32 s56, s21, 8")
    g("s_sub_u32 s57, 0x400000, s56")
    g("s_add_u32 s32, s10, s56")
    g("s_addc_u32 s33, s11, 0")
    g("s_and_b32 s33, s33, 0xffff")
    g("s_mov_b32 s34, s57")
    g("s_mov_b32 s35, 0x00020000")
    g("s_lshl_b32 s56, s2, 20")
    srd_off(g, 24, 6, 7, 56, 0x100000)
    srd_off(g, 28, 8, 9, 56, 0x100000)
    g("s_lshl_b32 s56, s21, 17")
    srd_off(g, 36, 12, 13, 56, 0x20000)
    srd(g, 44, 18, 19, WS_SIZE)
    srd(g, 48, 16, 17, 256)
    g("s_lshl_b32 s56, s2, 4")
    g("s_add_u32 s56, s56, s20")
    g("s_cmp_lg_u32 s56, 15")
    g("s_cbranch_scc1 L_nozero")
    for e in range(4):
        g(f"v_mov_b32 v{8+e}, 0")
    for k in range(32):
        if k % 4 == 0:
            g(f"s_mov_b32 s57, {k*1024}")
        off = f" offset:{(k&3)*1024}" if (k & 3) else ""
        g(f"buffer_store_dwordx4 v[8:11], v5, s[44:47], s57 offen{off} sc1")
    g("s_waitcnt vmcnt(0)")
    g("v_mov_b32 v9, 1")
    g("s_mov_b64 s[62:63], exec")
    g("s_mov_b64 exec, 1")
    g(f"buffer_atomic_add v9, v8, s[48:51], 0 offen offset:{D_ZFLAG}")
    g("s_mov_b64 exec, s[62:63]")
    g("s_waitcnt vmcnt(0)")
    g.label("L_nozero")
    g.issue("buffer_load_dwordx4 v[24:27], v5, s[40:43], 0 offen", "x")
    for i in range(8):
        g(f"s_mov_b32 s57, {i*32768}")
        g.issue(f"buffer_load_dwordx4 {vr(32+4*i,4)}, v6, s[32:35], s57 offen" + QNT, "wq")
    if QBAR:
        g("s_barrier")
    RING = 64
    def slot(n):
        return RING + 4 * (n % DEPTH)
    cur_soff = [None]
    def issue_stream(n):
        if DYNV and 64 <= n < 128:
            if n >= 80:
                return
            i = n - 64
            if i == 0:
                g(f"s_mul_i32 s63, s2, {ROT2}")
                g("s_lshl_b32 s59, s20, 14")
            g(f"s_add_u32 s58, s63, {i}")
            g("s_and_b32 s58, s58, 15")
            g("s_lshl_b32 s58, s58, 10")
            g("s_add_u32 s58, s58, s59")
            g.issue(f"buffer_load_dwordx4 {vr(slot(n),4)}, v5, s[28:31], s58 offen{nt}", ("s", n))
            return
        if n < 128:
            srdn = 24 if n < 64 else 28
            i = n % 64
            if ROT:
                g(f"s_add_u32 s58, s23, {i*1024}")
                g("s_and_b32 s58, s58, 0xffff")
                if BLK:
                    g("s_and_b32 s59, s58, 0xc000")
                    g("s_lshl_b32 s59, s59, 4")
                    g("s_and_b32 s58, s58, 0x3fff")
                    g("s_or_b32 s58, s58, s59")
                g.issue(f"buffer_load_dwordx4 {vr(slot(n),4)}, v4, {sr(srdn,4)}, s58 offen{nt}", ("s", n))
            else:
                so, imm = (i >> 2) * 4096, (i & 3) * 1024
                if so == 0:
                    sop = "0"
                else:
                    if cur_soff[0] != so:
                        g(f"s_mov_b32 s58, {so}")
                        cur_soff[0] = so
                    sop = "s58"
                off = f" offset:{imm}" if imm else ""
                g.issue(f"buffer_load_dwordx4 {vr(slot(n),4)}, v4, {sr(srdn,4)}, {sop} offen{off}{nt}", ("s", n))
        elif n < 136:
            j = n - 128
            if j == 0:
                g("s_lshl_b32 s59, s20, 13")
            if j == 4:
                g("s_add_u32 s59, s59, 4096")
            off = f" offset:{(j&3)*1024}" if (j & 3) else ""
            g.issue(f"buffer_load_dwordx4 {vr(32+4*j,4)}, v5, s[36:39], s59 offen{off}" + ONT, "wo")
    for n in range(DEPTH):
        issue_stream(n)
    g.wait_vm("x")
    X = list(range(16, 24))
    unpack8(g, 24, X)
    layernorm(g, X, 8, 24, 60, 61)
    g(f"ds_write_b128 v5, v[8:11] offset:{L_XN}")
    if DYNV:
        g("v_mov_b32 v6, 16")
        g("v_mov_b32 v7, 0")
        g(f"ds_write_b32 v7, v6 offset:{L_CNT}")
    g("s_lshl_b32 s56, s20, 6")
    g("v_lshlrev_b32 v7, 1, v3")
    g("v_add_u32 v7, s56, v7")
    g("s_waitcnt lgkmcnt(0)")
    for i in range(8):
        g(f"ds_read_u16 v{16+i}, v7 offset:{L_XN + i*8}")
    for e in range(8):
        g(f"v_mov_b32 v{24+e}, 0")
    g("s_waitcnt lgkmcnt(0)")
    for i in range(8):
        g(f"v_lshlrev_b32 v{8+i}, 16, v{16+i}")
    g.wait_vm("wq")
    for i in range(8):
        for e in range(4):
            g(f"v_dot2c_f32_bf16 v{24+2*e}, v{16+i}, v{32+4*i+e}")
            g(f"v_dot2c_f32_bf16 v{25+2*e}, v{8+i}, v{32+4*i+e}")
    g.nop(3)
    xrow_allreduce(g, list(range(24, 32)), list(range(16, 24)))
    g("s_lshl_b32 s56, s20, 9")
    g("v_lshlrev_b32 v7, 5, v2")
    g("v_add_u32 v6, s56, v7")
    g(f"ds_write_b128 v6, v[24:27] offset:{L_QP}")
    g(f"ds_write_b128 v6, v[28:31] offset:{L_QP+16}")
    g("v_lshl_add_u32 v6, v3, 11, v7")
    g("s_waitcnt lgkmcnt(0)")
    g("s_barrier")
    for k in range(4):
        g(f"ds_read_b128 {vr(32+8*k,4)}, v6 offset:{L_QP + k*512}")
        g(f"ds_read_b128 {vr(36+8*k,4)}, v6 offset:{L_QP + k*512 + 16}")
    g("s_waitcnt lgkmcnt(0)")
    for e in range(8):
        g(f"v_add_f32 v{32+e}, v{32+e}, v{40+e}")
        g(f"v_add_f32 v{48+e}, v{48+e}, v{56+e}")
    for e in range(8):
        g(f"v_add_f32 v{32+e}, v{32+e}, v{48+e}")
    xrow_allreduce(g, list(range(32, 40)), list(range(40, 48)))
    for e in range(4):
        g(f"v_cvt_pk_bf16_f32 v{8+e}, v{32+2*e}, v{33+2*e}")
    for r in range(4):
        g(f"v_mov_b32 v{12+r}, 0")
    if EARLYWO:
        for n in range(128, 136):
            issue_stream(n)
    GR = 4
    for j in range(64 // GR):
        ns = list(range(j*GR, j*GR + GR))
        g.wait_vm([("s", n) for n in ns])
        for e in range(4):
            for u, n in enumerate(ns):
                c = "0" if e == 0 else f"v{16+u}"
                g(f"v_dot2_f32_bf16 v{16+u}, v{slot(n)+e}, v{8+e}, {c}")
        for n in ns:
            issue_stream(n + DEPTH)
        for lv in (8, 4, 2, 1):
            for u in range(GR):
                g(f"v_add_f32_dpp v{16+u}, v{16+u}, v{16+u} row_ror:{lv} {DPPM}")
        for u, n in enumerate(ns):
            i, r = n % 16, n // 16
            g(f"v_cndmask_b32_e64 v{12+r}, v{12+r}, v{16+u}, s[{64+2*i}:{65+2*i}]")
    for r in range(4):
        bf16r(g, 12+r, 12+r)
        g(f"v_mul_f32 v{12+r}, 0x3db504f3, v{12+r}")
        bf16r(g, 12+r, 12+r)
    g("v_max3_f32 v16, v12, v13, v14")
    g("v_max_f32 v16, v16, v15")
    allreduce_to_sgpr(g, 16, 60, op="max")
    g("v_mov_b32 v16, s60")
    g("s_lshl_b32 s56, s20, 2")
    g("v_mov_b32 v17, s56")
    g(f"ds_write_b32 v17, v16 offset:{L_MAX}")
    g("v_lshlrev_b32 v7, 2, v2")
    g("s_waitcnt lgkmcnt(0)")
    g("s_barrier")
    g(f"ds_read_b32 v16, v7 offset:{L_MAX}")
    g("s_waitcnt lgkmcnt(0)")
    row_allreduce(g, 16, op="max")
    for r in range(4):
        g(f"v_sub_f32 v{12+r}, v{12+r}, v16")
        g(f"v_mul_f32 v{12+r}, 0x3fb8aa3b, v{12+r}")
        g(f"v_exp_f32 v{12+r}, v{12+r}")
    g.nop(1)
    g("v_add_f32 v18, v12, v13")
    g("v_add_f32 v19, v14, v15")
    g("v_add_f32 v18, v18, v19")
    allreduce_to_sgpr(g, 18, 60)
    g("v_mov_b32 v18, s60")
    g(f"ds_write_b32 v17, v18 offset:{L_SUM}")
    g("s_waitcnt lgkmcnt(0)")
    g("s_barrier")
    g(f"ds_read_b32 v18, v7 offset:{L_SUM}")
    g("s_waitcnt lgkmcnt(0)")
    row_allreduce(g, 18)
    g.nop(1)
    g("v_readlane_b32 s60, v18, 0")
    g.nop(2)
    g("v_mov_b32 v18, s60")
    g("v_rcp_f32 v19, v18")
    g.nop(1)
    if not DYNV:
        for r in range(4):
            g(f"v_mul_f32 v24, v{12+r}, v19")
            g(f"v_fma_f32 v25, -v24, v18, v{12+r}")
            g(f"v_fma_f32 v24, v25, v19, v24")
            g(f"v_cvt_pk_bf16_f32 v{20+r}, 0, v24")
            g(f"v_cvt_pk_bf16_f32 v{12+r}, v24, 0")
        PLO, PHI = 12, 20
        for e in range(8):
            g(f"v_mov_b32 v{24+e}, 0")
        g.nop(2)
        g.vm = [t for t in g.vm if t != "zf"]
        for j in range(64 // GR):
            ns = list(range(64 + j*GR, 64 + j*GR + GR))
            g.wait_vm([("s", n) for n in ns])
            for u, n in enumerate(ns):
                i, r = (n - 64) % 16, (n - 64) // 16
                for e in range(4):
                    g(f"v_dot2c_f32_bf16_dpp v{24+2*e}, v{PLO+r}, v{slot(n)+e} row_newbcast:{i} {DPPM}")
                    g(f"v_dot2c_f32_bf16_dpp v{25+2*e}, v{PHI+r}, v{slot(n)+e} row_newbcast:{i} {DPPM}")
                if not (EARLYWO and n + DEPTH >= 128):
                    issue_stream(n + DEPTH)
    else:
        g("s_lshr_b32 s56, s23, 10")
        g("s_lshl_b32 s57, s20, 9")
        for r in range(4):
            g(f"v_mul_f32 v24, v{12+r}, v19")
            g(f"v_fma_f32 v25, -v24, v18, v{12+r}")
            g(f"v_fma_f32 v24, v25, v19, v24")
            g(f"v_cvt_pk_bf16_f32 v{12+r}, v24, v24")
            g(f"v_add_u32 v25, {16*r}, v2")
            g("v_add_u32 v25, s56, v25")
            g("v_and_b32 v25, 63, v25")
            g("v_lshlrev_b32 v25, 3, v25")
            g("v_lshl_add_u32 v25, v3, 1, v25")
            g("v_add_u32 v25, s57, v25")
            g(f"ds_write_b16 v25, v{12+r} offset:{L_P}")
        g("v_add_u32 v16, s63, v2")
        g("v_and_b32 v16, 15, v16")
        g("v_lshlrev_b32 v16, 3, v16")
        g("v_lshl_add_u32 v16, v3, 1, v16")
        for e in range(8):
            g(f"v_mov_b32 v{24+e}, 0")
        g("v_mov_b32 v11, 0")
        g("s_mov_b32 s64, s20")
        g("s_mov_b64 s[70:71], exec")
        g("s_waitcnt lgkmcnt(0)")
        g("s_barrier")
        g.label("L_vloop")
        g("v_mov_b32 v10, 1")
        g("s_mov_b64 exec, 1")
        g(f"ds_add_rtn_u32 v10, v11, v10 offset:{L_CNT}")
        g("s_mov_b64 exec, s[70:71]")
        g("s_lshl_b32 s67, s64, 7")
        g("v_add_u32 v8, s67, v16")
        g(f"ds_read_u16 v8, v8 offset:{L_P}")
        g("s_waitcnt lgkmcnt(0)")
        g("v_readfirstlane_b32 s65, v10")
        g("v_lshlrev_b32 v9, 16, v8")
        g("s_lshl_b32 s67, s65, 14")
        for j in range(4):
            g("s_waitcnt vmcnt(12)")
            for u in range(4):
                i = 4*j + u
                for e in range(4):
                    g(f"v_dot2c_f32_bf16_dpp v{24+2*e}, v8, v{RING+4*i+e} row_newbcast:{i} {DPPM}")
                    g(f"v_dot2c_f32_bf16_dpp v{25+2*e}, v9, v{RING+4*i+e} row_newbcast:{i} {DPPM}")
                g(f"s_add_u32 s58, s63, {i}")
                g("s_and_b32 s58, s58, 15")
                g("s_lshl_b32 s58, s58, 10")
                g("s_add_u32 s58, s58, s67")
                g(f"buffer_load_dwordx4 {vr(RING+4*i,4)}, v5, s[28:31], s58 offen{nt}")
        g("s_mov_b32 s64, s65")
        g("s_cmp_lt_u32 s64, 64")
        g("s_cbranch_scc1 L_vloop")
        g.vm = []
    stamp(0)
    g.nop(3)
    xrow_allreduce(g, list(range(24, 32)), list(range(8, 16)))
    g("s_lshl_b32 s56, s20, 9")
    g("v_lshlrev_b32 v7, 5, v2")
    g("v_add_u32 v6, s56, v7")
    g(f"ds_write_b128 v6, v[24:27] offset:{L_OP}")
    g(f"ds_write_b128 v6, v[28:31] offset:{L_OP+16}")
    g("v_mov_b32 v10, 0")
    g.issue(f"buffer_load_dword v11, v10, s[48:51], 0 offen offset:{D_ZFLAG} sc1", "zfl")
    g("v_lshrrev_b32 v6, 3, v1")
    g("v_and_b32 v7, 7, v1")
    g("s_lshl_b32 s56, s20, 5")
    g("v_lshlrev_b32 v6, 9, v6")
    g("v_lshl_add_u32 v6, v7, 2, v6")
    g("v_add_u32 v6, s56, v6")
    g("s_waitcnt lgkmcnt(0)")
    g("s_barrier")
    g(f"ds_read_b32 v8, v6 offset:{L_OP}")
    g(f"ds_read_b32 v9, v6 offset:{L_OP+4096}")
    g("s_waitcnt lgkmcnt(0)")
    g("v_add_f32 v8, v8, v9")
    g.nop(2)
    g(f"v_add_f32_dpp v8, v8, v8 row_ror:8 {DPPM}")
    xrow_allreduce(g, [8], [9])
    bf16r(g, 8, 8)
    g.nop(1)
    for j in range(8):
        g(f"v_readlane_b32 s{72+j}, v8, {j}")
    g.nop(1)
    for j in range(8):
        g(f"s_lshr_b32 s{64+j}, s{72+j}, 16")
    for e in range(8):
        g(f"v_mov_b32 v{24+e}, 0")
    g.wait_all_vm()
    for j in range(8):
        for e in range(4):
            g(f"v_dot2c_f32_bf16 v{24+2*e}, s{64+j}, v{32+4*j+e}")
            g(f"v_dot2c_f32_bf16 v{25+2*e}, s{72+j}, v{32+4*j+e}")
    g("s_lshl_b32 s56, s20, 11")
    g("v_lshlrev_b32 v6, 5, v1")
    g("v_add_u32 v6, s56, v6")
    g.nop(2)
    g(f"ds_write_b128 v6, v[24:27] offset:{L_WP}")
    g(f"ds_write_b128 v6, v[28:31] offset:{L_WP+16}")
    g("v_and_b32 v6, 511, v0")
    g("v_lshlrev_b32 v6, 2, v6")
    g.label("L_zpoll")
    g("v_readfirstlane_b32 s56, v11")
    g("s_cmp_lg_u32 s56, 0")
    g("s_cbranch_scc1 L_zok")
    g("s_sleep 2")
    g(f"buffer_load_dword v11, v10, s[48:51], 0 offen offset:{D_ZFLAG} sc1")
    g("s_waitcnt vmcnt(0)")
    g("s_branch L_zpoll")
    g.label("L_zok")
    g("s_waitcnt lgkmcnt(0)")
    g("s_barrier")
    g("s_cmp_ge_u32 s20, 8")
    g("s_cbranch_scc1 L_skipred")
    for k in range(16):
        g(f"ds_read_b32 v{8+k}, v6 offset:{L_WP + k*2048}")
    g("s_waitcnt lgkmcnt(0)")
    for k in range(8):
        g(f"v_add_f32 v{8+k}, v{8+k}, v{16+k}")
    for k in range(4):
        g(f"v_add_f32 v{8+k}, v{8+k}, v{12+k}")
    g("v_add_f32 v8, v8, v9")
    g("v_add_f32 v10, v10, v11")
    g("v_add_f32 v8, v8, v10")
    g("s_lshl_b32 s56, s22, 11")
    g(f"s_add_u32 s56, s56, {WS_AACC}")
    g("buffer_atomic_add_f32 v8, v6, s[44:47], s56 offen")
    g.label("L_skipred")
    g("s_waitcnt vmcnt(0)")
    g("s_barrier")
    stamp(1)
    g("s_cmp_lg_u32 s20, 0")
    g("s_cbranch_scc1 L_tk")
    g("v_mov_b32 v8, 1")
    g("v_mov_b32 v10, 1")
    g("v_mov_b32 v9, 0")
    g("s_mov_b64 s[62:63], exec")
    g("s_mov_b64 exec, 1")
    g(f"buffer_atomic_add v10, v9, s[48:51], 0 offen offset:{D_ADONE}")
    g(f"buffer_atomic_add v8, v9, s[48:51], 0 offen offset:{D_TICKET} sc0")
    g("s_waitcnt vmcnt(0)")
    g(f"ds_write_b32 v9, v8 offset:{L_FLAG}")
    g("s_mov_b64 exec, s[62:63]")
    g("s_waitcnt lgkmcnt(0)")
    g.label("L_tk")
    g("s_barrier")
    g("v_mov_b32 v9, 0")
    g(f"ds_read_b32 v8, v9 offset:{L_FLAG}")
    g("s_waitcnt lgkmcnt(0)")
    g("v_readfirstlane_b32 s3, v8")
    g(f"s_cmp_ge_u32 s3, {NROLE}")
    g("s_cbranch_scc1 L_end")
    g("s_barrier")
    g.vm = []
    g("s_load_dwordx4 s[8:11], s[0:1], 48")
    g("s_load_dwordx4 s[12:15], s[0:1], 64")
    g("v_lshlrev_b32 v10, 4, v0")
    g("v_lshrrev_b32 v6, 2, v0")
    g("s_movk_i32 s57, 2752")
    g("v_mul_lo_u32 v6, v6, s57")
    g("v_and_b32 v7, 3, v0")
    g("s_lshl_b32 s56, s3, 6")
    g("v_lshl_add_u32 v6, v7, 4, v6")
    g("v_add_u32 v6, s56, v6")
    g(f"v_add_u32 v7, {M_GW}, v10")
    g(f"v_add_u32 v8, {M_UW}, v10")
    g(f"v_add_u32 v9, {M_DW}, v10")
    g("s_waitcnt lgkmcnt(0)")
    srd(g, 24, 8, 9, 1409024)
    srd(g, 52, 10, 11, 1409024)
    srd(g, 28, 12, 13, 1409024)
    srd(g, 32, 14, 15, 8192)
    srd(g, 36, 4, 5, 8192)
    g("s_mov_b32 s57, 704512")
    g("s_lshl_b32 s58, s3, 15")
    g("s_add_u32 s59, s58, 16384")
    g("buffer_load_dwordx4 v[16:19], v6, s[24:27], 0 offen " + FNT)
    g("buffer_load_dwordx4 v[20:23], v6, s[24:27], s57 offen " + FNT)
    g("buffer_load_dwordx4 v[24:27], v6, s[52:55], 0 offen " + FNT)
    g("buffer_load_dwordx4 v[28:31], v6, s[52:55], s57 offen " + FNT)
    g("buffer_load_dwordx4 v[32:35], v10, s[28:31], s58 offen " + FNT)
    g("buffer_load_dwordx4 v[36:39], v10, s[28:31], s59 offen " + FNT)
    g("buffer_load_dwordx4 v[12:15], v10, s[36:39], 0 offen")
    g("s_lshr_b32 s21, s20, 3")
    g("s_bfe_u32 s22, s20, 0x10002")
    g("s_and_b32 s23, s20, 3")
    g("v_lshrrev_b32 v2, 4, v1")
    g("v_bfe_u32 v3, v1, 2, 2")
    g("v_and_b32 v4, 3, v1")
    g("v_and_b32 v11, 7, v1")
    g("v_lshlrev_b32 v40, 10, v11")
    g("v_lshl_add_u32 v40, v2, 4, v40")
    g("s_lshl_b32 s56, s23, 8")
    g("v_add_u32 v40, s56, v40")
    g("v_lshl_add_u32 v41, v2, 3, v3")
    g("v_lshlrev_b32 v42, 6, v41")
    g("v_lshl_add_u32 v42, v4, 3, v42")
    g("s_lshl_b32 s56, s23, 13")
    g("s_lshl_b32 s57, s22, 5")
    g("s_add_u32 s56, s56, s57")
    g(f"s_mul_i32 s57, s21, {M_UW - M_GW}")
    g("s_add_u32 s56, s56, s57")
    g(f"s_add_u32 s56, s56, {M_GW}")
    g("v_add_u32 v42, s56, v42")
    g("v_lshlrev_b32 v43, 10, v41")
    g("v_lshl_add_u32 v43, v4, 3, v43")
    g("s_lshl_b32 s56, s20, 6")
    g(f"s_add_u32 s56, s56, {M_DW}")
    g("v_add_u32 v43, s56, v43")
    g("v_lshlrev_b32 v44, 6, v11")
    g("v_lshl_add_u32 v44, v2, 4, v44")
    g("v_and_b32 v45, 15, v1")
    g("v_lshlrev_b32 v46, 9, v2")
    g("v_lshl_add_u32 v46, v45, 2, v46")
    g("s_lshl_b32 s56, s23, 1")
    g("s_add_u32 s56, s56, s21")
    g("s_lshl_b32 s56, s56, 10")
    g("s_lshl_b32 s57, s22, 6")
    g("s_add_u32 s56, s56, s57")
    g("v_add_u32 v46, s56, v46")
    g("v_lshlrev_b32 v47, 13, v2")
    g("v_lshl_add_u32 v47, v45, 2, v47")
    g("s_lshl_b32 s56, s20, 7")
    g("v_add_u32 v47, s56, v47")
    g("s_waitcnt vmcnt(1)")
    g("ds_write_b128 v7, v[16:19]")
    g("ds_write_b128 v7, v[20:23] offset:16384")
    g("ds_write_b128 v8, v[24:27]")
    g("ds_write_b128 v8, v[28:31] offset:16384")
    g("ds_write_b128 v9, v[32:35]")
    g("ds_write_b128 v9, v[36:39] offset:16384")
    g("s_cmp_lg_u32 s20, 0")
    g("s_cbranch_scc1 L_polled")
    g("v_mov_b32 v16, 0")
    g.label("L_poll")
    g(f"buffer_load_dword v17, v16, s[48:51], 0 offen offset:{D_ADONE} sc1")
    g("s_waitcnt vmcnt(0)")
    g("v_readfirstlane_b32 s56, v17")
    g("s_cmp_ge_u32 s56, 256")
    g("s_cbranch_scc1 L_polled")
    g(f"s_sleep {SLEEP}")
    g("s_branch L_poll")
    g.label("L_polled")
    g("s_barrier")
    stamp(2)
    g("s_cmp_ge_u32 s20, 8")
    g("s_cbranch_scc1 L_noln")
    g("v_lshlrev_b32 v11, 5, v0")
    g(f"buffer_load_dwordx4 v[16:19], v11, s[44:47], 0 offen offset:{WS_AACC} sc1")
    g(f"buffer_load_dwordx4 v[20:23], v11, s[44:47], 0 offen offset:{WS_AACC+16} sc1")
    g("s_waitcnt vmcnt(0)")
    X = list(range(24, 32))
    unpack8(g, 12, X)
    for e in range(8):
        bf16r(g, 16+e, 16+e)
        g(f"v_add_f32 v{24+e}, v{24+e}, v{16+e}")
        bf16r(g, 24+e, 24+e)
    g(f"ds_write_b128 v11, v[24:27] offset:{M_H}")
    g(f"ds_write_b128 v11, v[28:31] offset:{M_H+16}")
    layernorm(g, X, 12, 32, 60, 61)
    g(f"ds_write_b128 v10, v[12:15] offset:{M_X}")
    g.label("L_noln")
    g("s_waitcnt vmcnt(0) lgkmcnt(0)")
    g("s_barrier")
    stamp(3)
    for st in range(4):
        g(f"ds_read_b128 {vr(48+4*st,4)}, v40 offset:{M_X + st*64}")
        g(f"ds_read_b64_tr_b16 {vr(64+4*st,2)}, v42 offset:{st*2048}")
        g(f"ds_read_b64_tr_b16 {vr(66+4*st,2)}, v42 offset:{st*2048+256}")
    for st in range(4):
        g(f"s_waitcnt lgkmcnt({9-3*st})")
        c = "0" if st == 0 else "v[80:83]"
        g(f"v_mfma_f32_16x16x32_bf16 v[80:83], {vr(48+4*st,4)}, {vr(64+4*st,4)}, {c}")
    g("s_nop 7")
    g("s_nop 3")
    g("s_mov_b32 exec_hi, 0")
    for r in range(4):
        g(f"ds_write_b32 v46, v{80+r} offset:{M_GU + r*128}")
    g("s_mov_b32 exec_hi, -1")
    g("v_lshlrev_b32 v12, 2, v0")
    g("s_waitcnt lgkmcnt(0)")
    g("s_barrier")
    stamp(4)
    g("s_cmp_ge_u32 s20, 4")
    g("s_cbranch_scc1 L_noact")
    for kq in range(4):
        g(f"ds_read_b32 v{16+kq}, v12 offset:{M_GU + kq*2048}")
        g(f"ds_read_b32 v{20+kq}, v12 offset:{M_GU + kq*2048 + 1024}")
    g("s_waitcnt lgkmcnt(0)")
    for base in (16, 20):
        g(f"v_add_f32 v{base}, v{base}, v{base+1}")
        g(f"v_add_f32 v{base+2}, v{base+2}, v{base+3}")
        g(f"v_add_f32 v{base}, v{base}, v{base+2}")
        bf16r(g, base, base)
    g("v_mul_f32 v17, 0xbfb8aa3b, v16")
    g("v_exp_f32 v17, v17")
    g.nop(1)
    g("v_add_f32 v17, 1.0, v17")
    g("v_rcp_f32 v18, v17")
    g.nop(1)
    g("v_mul_f32 v19, v16, v18")
    g("v_fma_f32 v21, -v19, v17, v16")
    g("v_fma_f32 v19, v21, v18, v19")
    g("v_mul_f32 v22, v16, v18")
    g("v_cmp_u_f32 vcc, v19, v19")
    g.nop(2)
    g("v_cndmask_b32 v19, v19, v22, vcc")
    bf16r(g, 19, 19)
    g("v_mul_f32 v19, v19, v20")
    g("v_cvt_pk_bf16_f32 v19, v19, v19")
    g("v_lshrrev_b32 v13, 1, v12")
    g(f"ds_write_b16 v13, v19 offset:{M_ACT}")
    g("s_waitcnt lgkmcnt(0)")
    g.label("L_noact")
    g("s_barrier")
    g(f"ds_read_b128 v[48:51], v44 offset:{M_ACT}")
    for i in range(2):
        g(f"ds_read_b64_tr_b16 {vr(64+4*i,2)}, v43 offset:{i*32}")
        g(f"ds_read_b64_tr_b16 {vr(66+4*i,2)}, v43 offset:{i*32+4096}")
    g("s_waitcnt lgkmcnt(0)")
    for i in range(2):
        g(f"v_mfma_f32_16x16x32_bf16 {vr(80+4*i,4)}, v[48:51], {vr(64+4*i,4)}, 0")
    g("s_nop 7")
    g("s_nop 3")
    g("s_mov_b32 exec_hi, 0")
    for i in range(2):
        for r in range(4):
            g(f"ds_write_b32 v47, v{80+4*i+r} offset:{M_DN + r*2048 + i*64}")
    g("s_mov_b32 exec_hi, -1")
    g("s_waitcnt lgkmcnt(0)")
    g("s_barrier")
    stamp(5)
    for j in range(4):
        g(f"ds_read_b32 v{16+j}, v12 offset:{M_DN + j*4096}")
    g(f"s_mov_b32 s56, {WS_OACC}")
    for j in range(4):
        g(f"s_waitcnt lgkmcnt({3-j})")
        if j:
            g("s_add_u32 s56, s56, 4096")
        g(f"buffer_atomic_add_f32 v{16+j}, v12, s[44:47], s56 offen")
    g("s_waitcnt vmcnt(0)")
    g("s_barrier")
    stamp(6)
    g("s_cmp_lg_u32 s20, 0")
    g("s_cbranch_scc1 L_wait_flag")
    g("v_mov_b32 v8, 1")
    g("v_mov_b32 v9, 0")
    g("s_mov_b64 s[62:63], exec")
    g("s_mov_b64 exec, 1")
    g(f"buffer_atomic_add v8, v9, s[48:51], 0 offen offset:{D_FDONE} sc0")
    g("s_waitcnt vmcnt(0)")
    g(f"ds_write_b32 v9, v8 offset:{M_FLAG}")
    g("s_mov_b64 exec, s[62:63]")
    g("s_waitcnt lgkmcnt(0)")
    g.label("L_wait_flag")
    g("s_barrier")
    g("v_mov_b32 v9, 0")
    g(f"ds_read_b32 v8, v9 offset:{M_FLAG}")
    g("s_waitcnt lgkmcnt(0)")
    g("v_readfirstlane_b32 s56, v8")
    g(f"s_cmp_lg_u32 s56, {NROLE-1}")
    g("s_cbranch_scc1 L_end")
    g(f"s_mov_b32 s56, {WS_OACC}")
    g("buffer_load_dwordx4 v[12:15], v10, s[44:47], s56 offen sc1")
    g(f"ds_read_b128 v[16:19], v10 offset:{M_H}")
    g("v_lshlrev_b32 v11, 3, v0")
    g("s_waitcnt vmcnt(0) lgkmcnt(0)")
    for e in range(4):
        bf16r(g, 12+e, 12+e)
        g(f"v_add_f32 v{12+e}, v{12+e}, v{16+e}")
    g("v_cvt_pk_bf16_f32 v20, v12, v13")
    g("v_cvt_pk_bf16_f32 v21, v14, v15")
    g("buffer_store_dwordx2 v[20:21], v11, s[32:35], 0 offen")
    stamp(7)
    g.label("L_end")
    g("s_endpgm")

def build(**kw):
    g = G(); gen(g, **kw)
    out = HEADER
    out += f"; @launch kernel={KNAME} grid=(256,1,1) block=(1024,1,1) lds={LDS_TOTAL}\n"
    out += '.amdgcn_target "amdgcn-amd-amdhsa--gfx950"\n.text\n'
    out += "\n".join(g.lines) + "\n"
    out += '.section .rodata,"a"\n.p2align 6\n'
    out += kd(KNAME, 128, 102)
    return out

if __name__ == "__main__":
    import argparse
    ap = argparse.ArgumentParser()
    ap.add_argument("-o", default="sequential_preLN__mha_block_cached__swiglu_ffn__decode.s")
    ap.add_argument("--stamp", action="store_true")
    ap.add_argument("--depth", type=int, default=16)
    ap.add_argument("--sleep", type=int, default=8)
    ap.add_argument("--qbar", action="store_true")
    ap.add_argument("--rot", default="5,4")
    ap.add_argument("--fnt", default="")
    ap.add_argument("--qnt", default="")
    ap.add_argument("--ont", default="")
    ap.add_argument("--blk", action="store_true")
    ap.add_argument("--latewo", action="store_true")
    ap.add_argument("--dynv", action="store_true")
    ap.add_argument("--rot2", type=int, default=1)
    a = ap.parse_args()
    open(a.o, "w").write(build(STAMP=a.stamp, DEPTH=a.depth, SLEEP=a.sleep, QBAR=a.qbar, ROT=(tuple(int(x) for x in a.rot.split(',')) if a.rot != 'none' else None), FNT=a.fnt, QNT=(' '+a.qnt if a.qnt else ''), ONT=(' '+a.ont if a.ont else ''), BLK=a.blk, EARLYWO=not a.latewo, DYNV=a.dynv, ROT2=a.rot2))
    print("wrote", a.o)
```
